```python
import torch

def _softmax(x, axis=-1):
    return torch.softmax(x, dim=axis)
def _gelu(x):
    return torch.nn.functional.gelu(x, approximate="tanh")
def _silu(x):
    return torch.nn.functional.silu(x)
def _sigmoid(x):
    return torch.sigmoid(x)
def _layernorm(x, axis=-1, eps=1e-5):
    m = x.mean(dim=axis, keepdim=True)
    v = x.var(dim=axis, keepdim=True, unbiased=False)
    return (x - m) / torch.sqrt(v + eps)
def _scatter_add(tgt, idx, src, axis=0):
    return tgt.clone().index_add_(axis, idx, src)
def _segment_sum(src, seg, n):
    out = torch.zeros((n,) + src.shape[1:], dtype=src.dtype)
    return out.index_add_(0, seg, src)
def _pad(x, pw):
    flat = tuple(v for pair in reversed(pw) for v in pair)
    return torch.nn.functional.pad(x, flat)

kernel_name = 'sequential_preLN__sliding_block__mixer_token_mlp__prompt'

def setup_inputs():

    _w = (lambda a: (lambda t: t.to(torch.bfloat16) if t.is_floating_point() else t)(torch.as_tensor(a)))
    def _A_setup():
        B, S, D = 1, 2048, 448
        return {
            "x": _w((lambda *s: torch.randn(*s, dtype=torch.bfloat16) * 0.05)(B, S, D)),
            "wqkv": _w((lambda *s: torch.randn(*s, dtype=torch.bfloat16) * 0.05)(D, 3 * D)),
            "wo": _w((lambda *s: torch.randn(*s, dtype=torch.bfloat16) * 0.05)(D, D)),
        }
    _A_in = _A_setup()

    def _B_setup():
        B, S, D, F = 1, 2048, 448, 1792
        return {
            "x": _w((lambda *s: torch.randn(*s, dtype=torch.bfloat16) * 0.05)(B, S, D)),
            "w1": _w((lambda *s: torch.randn(*s, dtype=torch.bfloat16) * 1.6)(S, F) * (S ** -0.5)),
            "b1": _w((lambda *s: torch.randn(*s, dtype=torch.bfloat16) * 1.6)(F) * 0.02),
            "w2": _w((lambda *s: torch.randn(*s, dtype=torch.bfloat16) * 0.2)(F, S) * (F ** -0.5)),
            "b2": _w((lambda *s: torch.randn(*s, dtype=torch.bfloat16) * 0.2)(S) * 0.02),
        }
    _B_in = _B_setup()

    return {
        "A_x": _A_in["x"],
        "A_wqkv": _A_in["wqkv"],
        "A_wo": _A_in["wo"],
        "B_x": _B_in["x"],
        "B_w1": _B_in["w1"],
        "B_b1": _B_in["b1"],
        "B_w2": _B_in["w2"],
        "B_b2": _B_in["b2"],
    }

def reference(A_x, A_wqkv, A_wo, B_x, B_w1, B_b1, B_w2, B_b2):
    def _A_ref(x, wqkv, wo):
        B, S, D = x.shape
        H = 16; Dh = D // H; W = 256
        qkv = (lambda x, *d: x.permute(*d))((x @ wqkv).reshape(B, S, 3, H, Dh), 2, 0, 3, 1, 4)
        q, k, v = qkv[0], qkv[1], qkv[2]
        scores = torch.einsum("bhqd,bhkd->bhqk", q, k) * (Dh ** -0.5)
        idx = torch.arange(S)
        mask = (idx[:, None] - idx[None, :] >= 0) & (idx[:, None] - idx[None, :] < W)
        scores = torch.where(mask[None, None], scores, -1e9)
        p = _softmax(scores, axis=-1)
        o = torch.einsum("bhqk,bhkd->bhqd", p, v)
        return (lambda x, *d: x.permute(*d))(o, 0, 2, 1, 3).reshape(B, S, D) @ wo

    def _B_ref(x, w1, b1, w2, b2):
        B, S, D = x.shape
        h = _layernorm(x, axis=-1)
        u = torch.einsum("bsd,sf->bdf", h, w1) + b1
        u = _gelu(u)
        y = torch.einsum("bdf,fs->bds", u, w2) + b2
        return (lambda x, *d: x.permute(*d))(y, 0, 2, 1)

    x = A_x
    h = x + _A_ref(_layernorm(x, axis=-1), A_wqkv, A_wo)
    h2 = h + _B_ref(_layernorm(h, axis=-1), B_w1, B_b1, B_w2, B_b2)
    return h2
```

```python
import re
TRANS = ("v_exp_", "v_log_", "v_rcp_", "v_rsq_", "v_sqrt_", "v_sin_", "v_cos_")
def regs(tok):
    tok = tok.strip().lstrip("-").strip("|")
    m = re.fullmatch(r"([vas])(\d+)", tok)
    if m: return {(m.group(1), int(m.group(2)))}
    m = re.fullmatch(r"([vas])\[(\d+):(\d+)\]", tok)
    if m: return {(m.group(1), i) for i in range(int(m.group(2)), int(m.group(3)) + 1)}
    if tok in ("vcc", "vcc_lo", "vcc_hi"): return {("s", "vcc")}
    if tok in ("exec", "exec_lo", "exec_hi"): return {("s", "exec")}
    if tok == "m0": return {("s", "m0")}
    return set()
class I:
    def __init__(s, line):
        s.line = line
        t = line.split(";")[0].strip()
        s.label = t[:-1] if t.endswith(":") else None
        s.op = ""; s.ops = []; s.kind = "none"; s.w = set(); s.r = set()
        if s.label or not t or t.startswith("."): return
        p = t.split(None, 1); s.op = p[0]
        rest = p[1] if len(p) > 1 else ""
        ops = [o.strip() for o in rest.split(",")] if rest else []
        if ops:
            last = ops[-1].split()
            s.mods = last[1:]; ops[-1] = last[0] if last else ""
        else: s.mods = []
        s.ops = ops; R = [regs(o) for o in ops]; op = s.op
        U = lambda l: set().union(*l) if l else set()
        if op.startswith("v_mfma"):
            s.kind = "mfma"; s.w = R[0]; s.a, s.b, s.c = R[1], R[2], R[3]; s.r = U(R[1:])
            s.passes = 8 if "32x32x16" in op else 4 if "16x16x32" in op else 2 if "4x4x4" in op else None
            assert s.passes, op
        elif op.startswith("v_"):
            s.kind = "valu"
            if "permlane" in op and "swap" in op: s.w = R[0] | R[1]; s.r = R[0] | R[1]
            elif op.startswith("v_cmp"):
                s.w = R[0]; s.r = U(R[1:])
                assert not op.startswith("v_cmpx")
            elif "_co_" in op:
                s.w = R[0] | R[1]; s.r = U(R[2:])
            elif op == "v_nop": pass
            else:
                s.w = R[0]; s.r = U(R[1:])
                if op.startswith(("v_fmac", "v_dot2c", "v_mac", "v_writelane")) or "sdwa" in op or "dpp" in op: s.r |= R[0]
                if op.startswith("v_cndmask") and len(ops) == 3: s.r |= {("s", "vcc")}
            s.trans = op.startswith(TRANS)
            s.dpp = "dpp" in op or any(m.startswith(("row_", "quad_perm", "wave_")) for m in s.mods)
            s.dot = op.startswith("v_dot")
        elif op.startswith("ds_"):
            s.kind = "ds"
            if op.startswith(("ds_read", "ds_bpermute", "ds_permute", "ds_swizzle")) or "_rtn" in op: s.w = R[0]; s.r = U(R[1:])
            else: s.r = U(R)
        elif op.startswith(("buffer_", "global_")):
            s.kind = "vmem"; s.lds = "lds" in s.mods or "_lds_" in op
            if op.startswith(("buffer_inv", "buffer_wbl2")): pass
            elif "load" in op and not s.lds: s.w = R[0]; s.r = U(R[1:])
            else:
                s.r = U(R)
                if "atomic" in op and "sc0" in s.mods: s.w = R[0]
            s.wide = ("store" in op) and ("x3" in op or "x4" in op)
            s.data = (R[0] if op.startswith("buffer_") else R[1]) if s.wide else set()
        elif op.startswith("s_"):
            s.kind = "salu"
            if op.startswith(("s_cmp", "s_cbranch", "s_branch", "s_waitcnt", "s_nop", "s_barrier", "s_endpgm", "s_sleep", "s_setprio", "s_bitcmp")): s.r = U(R)
            else:
                s.w = R[0] if R else set(); s.r = U(R[1:])
                if "saveexec" in op: s.w |= {("s", "exec")}
        else: raise Exception("unknown " + line)
    def states(s):
        if s.kind == "none": return 0
        if s.op == "s_nop": return int(s.ops[0]) + 1
        return 1
def need(p, c):
    n = 0
    if p.kind == "valu":
        vw = {r for r in p.w if r[0] in "va"}; sw = {r for r in p.w if r[0] == "s"}
        if c.kind == "mfma" and vw & c.r: n = max(n, 2)
        if c.kind == "vmem" and sw & c.r: n = max(n, 5)
        if c.kind == "valu":
            if sw & c.r: n = max(n, 4 if c.op.startswith(("v_readlane", "v_writelane")) else 2)
            if vw & c.r:
                if c.dpp or "permlane" in c.op: n = max(n, 2)
                if c.op.startswith(("v_readlane", "v_readfirstlane")): n = max(n, 1)
                if p.trans and not c.trans: n = max(n, 1)
                if "sdwa" in p.op or any(m.startswith("op_sel:") for m in p.mods): n = max(n, 1)
            if p.dot and (vw & (c.r | c.w)) and c.op != p.op: n = max(n, 3)
        if p.dot and c.kind in ("mfma", "ds", "vmem") and vw & (c.r | c.w): n = max(n, 3)
        if p.trans and c.kind in ("ds", "vmem") and vw & c.r: n = max(n, 1)
    elif p.kind == "mfma":
        k = {2: 0, 4: 1, 8: 2}[p.passes]
        if c.kind == "mfma":
            if p.w & c.c:
                if p.w == c.c and p.passes == c.passes: n = max(n, (2, 0, 0)[k])
                else: n = max(n, (4, 6, 10)[k])
            if p.w & (c.a | c.b): n = max(n, (5, 8, 12)[k])
            if (p.w & c.w) and not (p.w & c.c): n = max(n, (5, 8, 12)[k])
        elif c.kind in ("valu", "ds", "vmem"):
            if p.w & (c.r | c.w): n = max(n, (5, 8, 12)[k])
            if p.c & c.w: n = max(n, (1, 3, 7)[k])
    elif p.kind == "salu":
        if ("s", "m0") in p.w and c.kind == "vmem" and c.lds: n = max(n, 1)
    elif p.kind == "vmem":
        if p.wide and (p.data & c.w): n = max(n, 2 if c.kind == "valu" else 1)
    return n
def pad(lines):
    ins = [I(l) for l in lines]
    labpos = {x.label: i for i, x in enumerate(ins) if x.label}
    br = {}
    for i, x in enumerate(ins):
        if x.op.startswith(("s_cbranch", "s_branch")): br.setdefault(labpos[x.ops[0]], []).append(i)
    extra = [0] * len(ins)
    def look(i, dist, c, seen):
        best = 0
        while i >= 0 and dist < 21:
            x = ins[i]
            if x.label:
                for b in br.get(i, []):
                    if (b, dist) not in seen:
                        seen.add((b, dist)); best = max(best, look(b, dist, c, seen))
            if x.kind != "none":
                best = max(best, need(x, c) - dist)
                dist += x.states()
            dist += extra[i]
            i -= 1
            if i >= 0 and ins[i].op in ("s_branch", "s_endpgm"): break
        return best
    for i, c in enumerate(ins):
        if c.kind in ("none",): continue
        if i > 0 and ins[i - 1].op in ("s_branch", "s_endpgm"): continue
        extra[i] = look(i - 1, 0, c, set())
    out = []; tot = 0
    for i, x in enumerate(ins):
        n = extra[i]; tot += n
        while n > 0:
            k = min(n, 16); out.append(f"    s_nop {k-1}"); n -= k
        out.append(x.line)
    return out, tot
```

```python
import sys, struct, math
from asmlib import *
QF, KVF, OF, HF, HHF, UF, ST, TS = 0x0, 0x200000, 0x600000, 0x800000, 0xA00000, 0xC00000, 0xE00000, 0xF00000
WSZ = 0x1000000
PROF = "prof" in sys.argv
def f2u(x): return struct.unpack("<I", struct.pack("<f", x))[0]
def hx(x): return hex(f2u(x))
def vr(a, n): return f"v[{a}:{a+n-1}]"
def sr(a, n): return f"s[{a}:{a+n-1}]"

def srd(k, d, p, size, offs=None):
    if offs is None:
        k.e(f"s_mov_b32 s{d}, s{p}\ns_mov_b32 s{d+1}, s{p+1}")
    else:
        k.e(f"s_add_u32 s{d}, s{p}, {offs}\ns_addc_u32 s{d+1}, s{p+1}, 0")
    k.e(f"s_mov_b32 s{d+2}, {size}\ns_mov_b32 s{d+3}, 0x20000")

class Prof:
    def __init__(s, k, idx): s.k, s.n, s.idx = k, 0, idx
    def stamp(s):
        if PROF:
            s.k.e(f"s_memtime s[{76+2*s.n}:{77+2*s.n}]"); s.n += 1
    def flush(s, wsrd):
        if not PROF: return
        k = s.k
        k.e("s_memrealtime s[74:75]\ns_waitcnt lgkmcnt(0)")
        k.e(f"v_lshrrev_b32 v2, 6, v0\nv_lshlrev_b32 v2, 6, v2\ns_lshl_b32 s73, s2, 8\nv_add_u32 v2, s73, v2\nv_add_u32 v2, {TS + s.idx*0x10000}, v2")
        k.e("s_mov_b64 exec, 1")
        for i in range(s.n):
            k.e(f"v_mov_b32 v3, s{76+2*i}\nbuffer_store_dword v3, v2, {sr(wsrd,4)}, 0 offen offset:{4*i}")
        k.e(f"v_mov_b32 v3, s74\nbuffer_store_dword v3, v2, {sr(wsrd,4)}, 0 offen offset:60")
        k.e(f"v_mov_b32 v3, s72\nbuffer_store_dword v3, v2, {sr(wsrd,4)}, 0 offen offset:56")
    def start(s):
        if PROF: s.k.e("s_memrealtime s[72:73]"); s.stamp()

def head(k, nwg):
    k.e(f"s_cmp_ge_u32 s2, {nwg}\ns_cbranch_scc1 {k.name}_end")
def wave_lane(k):
    k.e("v_lshrrev_b32 v2, 6, v0\nv_and_b32 v1, 63, v0\nv_readfirstlane_b32 s3, v2")
def tail(k):
    k.e(f"{k.name}_end:\ns_endpgm")
def hb_map(k):
    k.e("""s_and_b32 s26, s2, 7
    s_lshr_b32 s27, s2, 3
    s_lshr_b32 s11, s26, 1
    s_lshl_b32 s11, s11, 2
    s_and_b32 s28, s27, 3
    s_add_u32 s11, s11, s28
    s_and_b32 s10, s26, 1
    s_lshl_b32 s10, s10, 3
    s_lshr_b32 s28, s27, 2
    s_add_u32 s10, s10, s28""")

def k1():
    k = Kern("qkv_kernel", 256, 256, 160512, 208)
    P = Prof(k, 0)
    WB, CS, SCR = 65536, 156928, 158464
    head(k, 256); P.start()
    k.e("s_load_dwordx4 s[4:7], s[0:1], 0\ns_load_dwordx2 s[8:9], s[0:1], 80")
    wave_lane(k); hb_map(k)
    XA, WA, XR, WR, FB, AQ, AK, AV, SS, CA, ON = 10, 14, 16, 20, 32, 64, 80, 96, 112, 120, 132
    k.e("""v_lshrrev_b32 v3, 3, v1
    v_mul_u32_u24 v3, 896, v3
    v_and_b32 v4, 7, v1
    v_lshrrev_b32 v5, 4, v1
    v_xor_b32 v4, v4, v5
    v_lshl_add_u32 v10, v4, 4, v3
    v_xor_b32 v4, 4, v4
    v_lshl_add_u32 v11, v4, 4, v3
    v_add_u32 v12, 12288, v10
    v_add_u32 v13, 18432, v11
    v_add_u32 v11, 6144, v11
    v_lshrrev_b32 v3, 2, v1
    v_mul_u32_u24 v3, 2688, v3
    v_and_b32 v4, 3, v1
    v_lshl_add_u32 v14, v4, 4, v3
    s_lshl_b32 s26, s11, 2
    s_add_u32 s26, s26, s3
    s_mul_i32 s27, s26, 28672
    s_mul_i32 s28, s10, 56
    s_sub_u32 s29, 1204224, s28
    s_lshl_b32 s30, s3, 14
    s_mul_i32 s31, s3, 3264
    s_mul_i32 s33, s3, 43008
    s_waitcnt lgkmcnt(0)""")
    srd(k, 12, 4, 28672, "s27"); srd(k, 16, 6, "s29", "s28"); srd(k, 20, 8, WSZ)
    def dma(c):
        k.e(f"s_add_u32 m0, s30, {(c&3)*4096}\ns_movk_i32 s24, {c*128}")
        for q in range(4):
            k.e(f"buffer_load_dwordx4 v{XA+q}, s[12:15], s24 offen offset:{q*1024} lds")
        for t in range(3):
            k.e(f"s_add_u32 m0, s31, {WB + c*13056 + t*1088}\ns_add_u32 s25, s33, {c*172032 + t*896}")
            k.e(f"buffer_load_dwordx4 v{WA}, s[16:19], s25 offen lds")
    for c in range(4): dma(c)
    P.stamp()
    k.e(f"""v_mov_b32 v4, 0
    v_mov_b32 v5, 0
    v_mov_b32 v6, 0
    v_mov_b32 v7, 0
    s_mul_i32 s27, s2, 896
    s_add_u32 s27, s27, {ST}
    v_lshlrev_b32 v3, 4, v0
    v_cmp_gt_u32 vcc, 84, v0
    s_and_saveexec_b64 s[34:35], vcc
    v_mul_u32_u24 v8, 171, v0
    v_lshrrev_b32 v8, 9, v8
    v_mul_u32_u24 v8, 3, v8
    v_cmp_eq_u32 vcc, v8, v0
    v_mov_b32 v9, 0x3f80
    v_cndmask_b32 v8, 0, v9, vcc
    v_mov_b32 v9, 0
    v_mul_u32_u24 v2, 1088, v0
    v_add_u32 v2, {WB + 1080}, v2
    ds_write_b64 v2, v[8:9]
    s_mov_b64 exec, s[34:35]""")
    k.e("""v_and_b32 v2, 31, v1
    v_lshrrev_b32 v3, 5, v1
    v_lshrrev_b32 v4, 1, v2
    v_and_b32 v4, 7, v4
    v_xor_b32 v4, v4, v3
    s_lshl_b32 s27, s3, 1
    v_xor_b32 v4, s27, v4
    v_lshlrev_b32 v5, 7, v2
    v_add_u32 v5, s30, v5""")
    for j in range(4):
        k.e(f"v_xor_b32 v6, {2*j}, v4\nv_lshl_add_u32 v{XR+j}, v6, 4, v5")
    k.e(f"""v_bfe_u32 v4, v1, 2, 2
    v_lshl_add_u32 v4, v3, 3, v4
    v_lshlrev_b32 v4, 6, v4
    v_bfe_u32 v5, v1, 4, 1
    v_lshl_add_u32 v4, v5, 5, v4
    v_and_b32 v6, 3, v1
    v_lshl_add_u32 v4, v6, 3, v4
    v_add_u32 v7, 256, v4
    v_and_b32 v6, 19, v1
    v_cmp_eq_u32 vcc, 19, v6
    v_mov_b32 v6, 1080
    v_cndmask_b32 v4, v4, v6, vcc
    v_cndmask_b32 v7, v7, v6, vcc""")
    for j in range(4):
        k.e(f"s_xor_b32 s27, s3, {j}\ns_mul_i32 s27, s27, 3264\ns_add_u32 s27, s27, {WB}")
        k.e(f"v_add_u32 v{WR+2*j}, s27, v4\nv_add_u32 v{WR+2*j+1}, s27, v7")
    k.e(f"v_mov_b32 v{ON}, 0x3f803f80\nv_mov_b32 v{ON+1}, 0x3f803f80")
    def reads(g):
        c, j = g >> 2, g & 3; b = FB + 16 * (g & 1)
        k.e(f"ds_read_b128 {vr(b,4)}, v{XR+j} offset:{(c&3)*4096}")
        for t in range(3):
            for rd in range(2):
                k.e(f"ds_read_b64_tr_b16 {vr(b+4+4*t+2*rd,2)}, v{WR+2*j+rd} offset:{(c&3)*13056 + t*1088}")
    k.e("s_waitcnt vmcnt(21) lgkmcnt(0)\ns_barrier")
    P.stamp()
    reads(0)
    for g in range(28):
        c, j = g >> 2, g & 3; b = FB + 16 * (g & 1)
        if g + 1 < 28:
            if j == 3:
                nout = 7 * (min(c + 3, 6) - (c + 1))
                k.e(f"s_waitcnt vmcnt({nout})\ns_barrier")
                if c == 3:
                    for i in range(8): k.e(f"v_add_u32 v{WR+i}, {4*13056}, v{WR+i}")
            reads(g + 1)
            k.e("s_waitcnt lgkmcnt(7)")
        else:
            k.e("s_waitcnt lgkmcnt(0)")
        z = lambda a, n: vr(a, n) if g else "0"
        k.e(f"v_mfma_f32_32x32x16_bf16 {vr(AQ,16)}, {vr(b+4,4)}, {vr(b,4)}, {z(AQ,16)}")
        k.e(f"v_mfma_f32_4x4x4_16b_bf16 {vr(SS,4)}, {vr(b,2)}, {vr(b,2)}, {z(SS,4)}")
        k.e(f"v_mfma_f32_32x32x16_bf16 {vr(AK,16)}, {vr(b+8,4)}, {vr(b,4)}, {z(AK,16)}")
        k.e(f"v_mfma_f32_4x4x4_16b_bf16 {vr(SS+4,4)}, {vr(b+2,2)}, {vr(b+2,2)}, {z(SS+4,4)}")
        k.e(f"v_mfma_f32_32x32x16_bf16 {vr(AV,16)}, {vr(b,4)}, {vr(b+12,4)}, {z(AV,16)}")
        if j == 0:
            for hlf in range(2):
                for t in range(3):
                    cc = vr(CA+4*t, 4) if (g or hlf) else "0"
                    k.e(f"v_mfma_f32_4x4x4_16b_bf16 {vr(CA+4*t,4)}, {vr(ON,2)}, {vr(b+4+4*t+2*hlf,2)}, {cc}")
        if j == 3 and c + 4 < 7: dma(c + 4)
    P.stamp()
    k.e(f"""v_and_b32 v2, 31, v1
    v_lshlrev_b32 v3, 4, v2
    s_lshl_b32 s27, s3, 2
    v_add_u32 v4, s27, v3
    v_add_u32 v4, {CS}, v4
    v_add_u32 v3, {CS}, v3
    s_lshl_b32 s27, s3, 9
    s_add_u32 s27, s27, {SCR}
    v_lshl_add_u32 v5, v2, 2, s27
    v_lshrrev_b32 v6, 5, v1
    v_lshl_add_u32 v6, v6, 4, s27""")
    for t in range(3):
        k.e(f"v_mov_b32 v{CA+4*t+1}, v{CA+4*t}")
    for t in range(3):
        k.e(f"v_permlane32_swap_b32 v{CA+4*t}, v{CA+4*t+1}")
    for t in range(3):
        k.e(f"v_add_f32 v{CA+4*t}, v{CA+4*t}, v{CA+4*t+1}\nds_write_b32 v4, v{CA+4*t} offset:{512*t}")
    for i in range(4): k.e(f"v_add_f32 v{SS+i}, v{SS+i}, v{SS+4+i}")
    k.e(f"""v_and_b32 v7, 3, v1
    v_cmp_eq_u32 vcc, 1, v7
    v_cmp_eq_u32 s[34:35], 2, v7
    v_cmp_eq_u32 s[36:37], 3, v7
    v_cndmask_b32 v{SS}, v{SS}, v{SS+1}, vcc
    v_cndmask_b32 v{SS}, v{SS}, v{SS+2}, s[34:35]
    v_cndmask_b32 v{SS}, v{SS}, v{SS+3}, s[36:37]
    v_mov_b32 v8, v{AQ+12}
    v_mov_b32 v9, v{AQ+12}
    v_mov_b32 v{SS+1}, v{SS}
    s_waitcnt lgkmcnt(0)
    s_barrier
    ds_read_b128 v[32:35], v3
    ds_read_b128 v[36:39], v3 offset:512
    ds_read_b128 v[40:43], v3 offset:1024
    v_permlane32_swap_b32 v8, v9
    v_permlane32_swap_b32 v{SS}, v{SS+1}
    v_mul_f32 v9, {hx(1/448)}, v9
    v_add_f32 v8, v{SS}, v{SS+1}
    v_mul_f32 v8, {hx(1/448)}, v8
    v_fma_f32 v8, -v9, v9, v8
    v_max_f32 v8, 0, v8
    v_add_f32 v8, {hx(1e-5)}, v8
    v_rsq_f32 v8, v8
    s_nop 0
    v_mul_f32 v7, v8, v9
    ds_write_b32 v5, v8 offset:256
    ds_write_b32 v5, v7 offset:384
    s_waitcnt lgkmcnt(2)""")
    for t in range(3):
        b = 32 + 4 * t
        k.e(f"v_add_f32 v{b}, v{b}, v{b+1}\nv_add_f32 v{b+2}, v{b+2}, v{b+3}\nv_add_f32 v{b}, v{b}, v{b+2}")
    k.e("ds_write_b32 v5, v32\nds_write_b32 v5, v36 offset:128\ns_waitcnt lgkmcnt(0)")
    TB = 144
    for a in range(4):
        for i in range(4):
            k.e(f"ds_read_b128 {vr(TB+16*a+4*i,4)}, v6 offset:{128*a+32*i}")
    cq = 28 ** -0.5 * math.log2(math.e)
    k.e(f"""v_mul_f32 v7, {hx(cq)}, v8
    s_lshl_b32 s27, s10, 6
    s_add_u32 s27, s27, s26
    s_lshl_b32 s28, s27, 11
    s_lshl_b32 s29, s27, 12
    s_add_u32 s29, s29, {KVF}
    v_lshlrev_b32 v2, 4, v1
    v_and_b32 v3, 31, v1
    v_cmp_eq_u32 vcc, 28, v3
    v_mov_b32 v3, 0x3f803f80
    s_waitcnt lgkmcnt(12)""")
    for r in range(16): k.e(f"v_fma_f32 v{AQ+r}, -v9, v{TB+r}, v{AQ+r}")
    for r in range(16): k.e(f"v_mul_f32 v{AQ+r}, v7, v{AQ+r}")
    for r in range(8): k.e(f"v_cvt_pk_bf16_f32 v{44+r}, v{AQ+2*r}, v{AQ+2*r+1}")
    k.e("buffer_store_dwordx4 v[44:47], v2, s[20:23], s28 offen\nbuffer_store_dwordx4 v[48:51], v2, s[20:23], s28 offen offset:1024")
    k.e("s_waitcnt lgkmcnt(8)")
    for r in range(16): k.e(f"v_fma_f32 v{AK+r}, -v9, v{TB+16+r}, v{AK+r}")
    for r in range(16): k.e(f"v_mul_f32 v{AK+r}, v8, v{AK+r}")
    for r in range(8): k.e(f"v_cvt_pk_bf16_f32 v{52+r}, v{AK+2*r}, v{AK+2*r+1}")
    k.e("buffer_store_dwordx4 v[52:55], v2, s[20:23], s29 offen\nbuffer_store_dwordx4 v[56:59], v2, s[20:23], s29 offen offset:1024")
    k.e("s_waitcnt lgkmcnt(0)")
    for r in range(16): k.e(f"v_mul_f32 v{AV+r}, v{TB+32+r}, v{AV+r}")
    for r in range(16): k.e(f"v_fma_f32 v{AV+r}, -v{TB+48+r}, v40, v{AV+r}")
    for r in range(8): k.e(f"v_cvt_pk_bf16_f32 v{AQ+r}, v{AV+2*r}, v{AV+2*r+1}")
    for r in range(8): k.e(f"v_cndmask_b32 v{AQ+r}, v{AQ+r}, v3, vcc")
    k.e(f"buffer_store_dwordx4 {vr(AQ,4)}, v2, s[20:23], s29 offen offset:2048\nbuffer_store_dwordx4 {vr(AQ+4,4)}, v2, s[20:23], s29 offen offset:3072")
    k.e(f"""v_mov_b32 v4, 0
    v_mov_b32 v5, 0
    v_mov_b32 v6, 0
    v_mov_b32 v7, 0
    s_mul_i32 s27, s2, 896
    s_add_u32 s27, s27, {ST}
    v_lshlrev_b32 v3, 4, v0
    v_cmp_gt_u32 vcc, 56, v0
    s_and_saveexec_b64 s[34:35], vcc
    s_cbranch_execz {k.name}_nz
    buffer_store_dwordx4 v[4:7], v3, s[20:23], s27 offen
    {k.name}_nz:
    s_mov_b64 exec, s[34:35]""")
    P.stamp(); P.flush(20)
    tail(k)
    return k

def k2():
    k = Kern("attn_kernel", 256, 256, 49152, 256)
    P = Prof(k, 1)
    head(k, 256); P.start()
    k.e("s_load_dwordx2 s[8:9], s[0:1], 80")
    wave_lane(k); hb_map(k)
    Q, KB, VB, PK, PF, MK, OA, S = 8, 16, 32, 48, 56, 224, 232, 64
    k.e(f"""s_lshl_b32 s26, s11, 2
    s_add_u32 s26, s26, s3
    s_lshl_b32 s27, s10, 18
    s_add_u32 s27, s27, {KVF}
    s_lshl_b32 s28, s10, 6
    s_add_u32 s28, s28, s26
    s_lshl_b32 s28, s28, 11
    s_lshl_b32 s29, s11, 2
    s_mul_i32 s30, s3, 3
    s_add_u32 s29, s29, s30
    s_sub_u32 s29, s29, 8
    s_lshl_b32 s29, s29, 12
    s_mul_i32 s30, s3, 12288
    v_lshlrev_b32 v2, 4, v1
    v_add_u32 v3, s29, v2
    v_add_u32 v4, 4096, v3
    v_add_u32 v5, 8192, v3
    s_waitcnt lgkmcnt(0)""")
    srd(k, 12, 8, 0x40000, "s27"); srd(k, 20, 8, WSZ)
    k.e(f"buffer_load_dwordx4 {vr(Q,4)}, v2, s[20:23], s28 offen\nbuffer_load_dwordx4 {vr(Q+4,4)}, v2, s[20:23], s28 offen offset:1024")
    for n in range(3):
        k.e(f"s_add_u32 m0, s30, {n*4096}")
        for q in range(4): k.e(f"buffer_load_dwordx4 v{3+n}, s[12:15], 0 offen offset:{q*1024} lds")
    P.stamp()
    k.e("""v_and_b32 v6, 31, v1
    v_lshrrev_b32 v7, 5, v1
    v_lshlrev_b32 v7, 2, v7
    v_sub_u32 v6, v6, v7
    s_sub_u32 s31, 8, s26
    s_max_i32 s31, s31, 0
    s_lshl_b32 s33, s3, 12
    v_add_u32 v7, s33, v2""")
    for r in range(16):
        k.e(f"v_cmp_le_i32 {sr(36+2*r,2)}, {(r&3)+8*(r>>2)}, v6")
    k.e("v_mov_b32 v3, 0xffff\nv_mov_b32 v4, 0xffff0000")
    for r in range(8):
        k.e(f"v_cndmask_b32 v5, 0, v3, {sr(36+4*r,2)}\nv_cndmask_b32 v{MK+r}, 0, v4, {sr(38+4*r,2)}\nv_or_b32 v{MK+r}, v5, v{MK+r}")
    k.e("s_waitcnt vmcnt(0)\ns_barrier")
    P.stamp()
    order = [0, 8, 1, 2, 3, 4, 5, 6, 7]
    def rdk(n):
        t = order[n]; b = KB + 8 * (n & 1)
        k.e(f"ds_read_b128 {vr(b,4)}, v7 offset:{t*4096}\nds_read_b128 {vr(b+4,4)}, v7 offset:{t*4096+1024}")
    def mx(t, first):
        for i in range(8):
            a = S + 16 * t + 2 * i
            if first and i == 0: k.e(f"v_max_f32 v5, v{a}, v{a+1}")
            else: k.e(f"v_max3_f32 v5, v{a}, v{a+1}, v5")
    rdk(0)
    inv = []
    for n in range(9):
        t = order[n]; b = KB + 8 * (n & 1)
        if n < 8: rdk(n + 1); k.e("s_waitcnt lgkmcnt(2)")
        else: k.e("s_waitcnt lgkmcnt(0)")
        if t < 8:
            l1, l2 = k.lab("inv"), k.lab("back")
            k.e(f"s_cmp_gt_i32 s31, {t}\ns_cbranch_scc1 {l1}")
            inv.append((l1, l2, t))
        k.e(f"v_mfma_f32_32x32x16_bf16 {vr(S+16*t,16)}, {vr(b,4)}, {vr(Q,4)}, 0")
        k.e(f"v_mfma_f32_32x32x16_bf16 {vr(S+16*t,16)}, {vr(b+4,4)}, {vr(Q+4,4)}, {vr(S+16*t,16)}")
        if t < 8: k.e(f"{l2}:")
        if n == 3:
            for r in range(16): k.e(f"v_cndmask_b32 v{S+r}, v{S+r}, v{S+128+r}, {sr(36+2*r,2)}")
        if n == 4: mx(0, True); mx(1, False)
        if n > 4: mx(n - 3, False)
    vord = [1, 2, 3, 4, 5, 6, 7, 8, 0]
    def rdv(n):
        t = vord[n]; b = VB + 8 * (n & 1)
        k.e(f"ds_read_b128 {vr(b,4)}, v7 offset:{t*4096+2048}\nds_read_b128 {vr(b+4,4)}, v7 offset:{t*4096+3072}")
    rdv(0)
    mx(6, False); mx(7, False)
    k.e("v_mov_b32 v6, v5\nv_permlane32_swap_b32 v5, v6\nv_max_f32 v5, v5, v6")
    P.stamp()
    def soft(t, dst, mids):
        seq = []
        for i in range(8):
            a = S + 16 * t + 2 * i
            seq.append(f"v_sub_f32 v{a}, v{a}, v5\nv_sub_f32 v{a+1}, v{a+1}, v5\nv_exp_f32 v{a}, v{a}\nv_exp_f32 v{a+1}, v{a+1}")
        for i in range(8):
            k.e(seq[i])
            if i > 0:
                a = S + 16 * t + 2 * (i - 1); k.e(f"v_cvt_pk_bf16_f32 v{dst+i-1}, v{a}, v{a+1}")
            if i in mids: k.e(mids[i])
        a = S + 16 * t + 14
        k.e(f"v_nop\nv_cvt_pk_bf16_f32 v{dst+7}, v{a}, v{a+1}")
    def pv(n, p, hlf):
        b = VB + 8 * (n & 1) + 4 * hlf
        c = vr(OA, 16) if (n or hlf) else "0"
        return f"v_mfma_f32_32x32x16_bf16 {vr(OA,16)}, {vr(b,4)}, {vr(p+4*hlf,4)}, {c}"
    pb = [PK, PF]
    for n in range(8):
        t = vord[n] if n < 7 else 0
        mids = {}
        if n > 0:
            mids[1] = "s_waitcnt lgkmcnt(0)\n" + pv(n - 1, pb[(n - 1) & 1], 0)
            mids[3] = pv(n - 1, pb[(n - 1) & 1], 1)
        soft(t, pb[n & 1], mids)
        if n > 0 or True:
            pass
        if n < 8:
            rdv(n + 1) if n == 0 else None
        if n > 0: rdv(n + 1)
    for r in range(8): k.e(f"v_and_b32 v{PK+r}, v{MK+r}, v{PF+r}")
    for r in range(8): k.e(f"v_bfi_b32 v{PF+r}, v{MK+r}, 0, v{PF+r}")
    k.e("s_waitcnt lgkmcnt(0)")
    k.e(pv(7, PK, 0)); k.e(pv(7, PK, 1)); k.e(pv(8, PF, 0)); k.e(pv(8, PF, 1))
    P.stamp()
    k.e(f"""s_lshl_b32 s28, s26, 4
    s_add_u32 s28, s28, s10
    s_lshl_b32 s28, s28, 11
    s_add_u32 s28, s28, {OF}
    v_cmp_gt_u32 vcc, 32, v1
    v_mov_b32 v5, v{OA+12}
    v_mov_b32 v6, v{OA+12}
    v_permlane32_swap_b32 v5, v6
    v_rcp_f32 v6, v6""")
    for r in range(16): k.e(f"v_mul_f32 v{OA+r}, v6, v{OA+r}")
    for r in range(8): k.e(f"v_cvt_pk_bf16_f32 v{PK+r}, v{OA+2*r}, v{OA+2*r+1}")
    k.e(f"v_cndmask_b32 v{PK+6}, 0, v{PK+6}, vcc\nv_cndmask_b32 v{PK+7}, 0, v{PK+7}, vcc")
    k.e(f"buffer_store_dwordx4 {vr(PK,4)}, v2, s[20:23], s28 offen\nbuffer_store_dwordx4 {vr(PK+4,4)}, v2, s[20:23], s28 offen offset:1024")
    P.stamp(); P.flush(20)
    k.e(f"{k.name}_end:\ns_endpgm")
    for l1, l2, t in inv:
        k.e(f"{l1}:")
        for r in range(16): k.e(f"v_mov_b32 v{S+16*t+r}, 0xff800000")
        k.e(f"s_branch {l2}")
    return k

ACC, ACT, WF = 64, 128, 192
RED = 65536
def gemm_setup(k, wstride, astride, perm):
    k.e(f"""v_lshrrev_b32 v3, 3, v1
    v_mul_u32_u24 v3, {wstride}, v3
    v_and_b32 v4, 7, v1
    v_bfe_u32 v5, v1, 4, 1
    v_lshlrev_b32 v5, 2, v5
    v_xor_b32 v4, v4, v5
    v_lshl_add_u32 v10, v4, 4, v3
    v_add_u32 v11, {8*wstride-1024}, v10
    s_lshr_b32 s34, s3, 1
    s_and_b32 s35, s3, 1
    s_mul_i32 s36, s34, {astride}
    s_xor_b32 s37, s34, 1
    s_mul_i32 s37, s37, {astride}
    v_lshlrev_b32 v2, 4, v1
    v_add_u32 v12, s36, v2
    v_add_u32 v13, s37, v2
    s_lshl_b32 s30, s3, 14""")
def gemm_setup2(k, perm):
    k.e(f"""v_lshrrev_b32 v3, 5, v1
    v_bfe_u32 v4, v1, 2, 2
    v_lshl_add_u32 v4, v3, {2 if perm else 3}, v4
    v_lshlrev_b32 v4, 7, v4
    v_bfe_u32 v5, v1, 4, 1
    v_lshl_add_u32 v4, v5, 5, v4
    v_and_b32 v5, 3, v1
    v_lshl_add_u32 v4, v5, 3, v4
    v_add_u32 v4, s30, v4
    v_bfe_u32 v5, v1, 3, 1
    v_xor_b32 v5, s35, v5
    v_lshl_add_u32 v14, v5, 6, v4
    v_xor_b32 v5, 1, v5
    v_lshl_add_u32 v15, v5, 6, v4""")
    for x in range(1, 4):
        k.e(f"s_xor_b32 s36, s3, {x}\ns_mul_i32 s36, s36, 12288\ns_add_u32 s36, s36, {RED + (x-1)*4096}\nv_add_u32 v{15+x}, s36, v2")
    k.e(f"s_mul_i32 s36, s3, 12288\ns_add_u32 s36, s36, {RED}\nv_add_u32 v19, s36, v2")
def gemm_issue(k, s, D, wrow):
    sl = s % D
    k.e(f"s_add_u32 m0, s30, {sl*2048}\ns_mov_b32 s24, {wrow(s)}\ns_mov_b32 s25, {s*1024}")
    k.e("buffer_load_dwordx4 v10, s[12:15], s24 offen lds\nbuffer_load_dwordx4 v11, s[12:15], s24 offen offset:1024 lds")
    k.e(f"buffer_load_dwordx4 {vr(ACT+8*sl,4)}, v12, s[16:19], s25 offen\nbuffer_load_dwordx4 {vr(ACT+8*sl+4,4)}, v13, s[16:19], s25 offen")
def gemm_loop(k, n, D, wrow, perm, act_is_B, P):
    rdo = 1024 if perm else 512
    def reads(s):
        b = WF + 8 * (s & 1)
        for j in range(2):
            for rd in range(2):
                k.e(f"ds_read_b64_tr_b16 {vr(b+4*j+2*rd,2)}, v{14+j} offset:{(s%D)*2048 + rd*rdo}")
    k.e(f"s_waitcnt vmcnt({4*(min(D,n)-1)})")
    P.stamp()
    reads(0)
    for s in range(n):
        if s + 1 < n:
            k.e(f"s_waitcnt vmcnt({4*(min(s+D,n)-s-2)})")
            reads(s + 1); k.e("s_waitcnt lgkmcnt(4)")
        else: k.e("s_waitcnt lgkmcnt(0)")
        a0 = ACT + 8 * (s % D); b = WF + 8 * (s & 1)
        for i in range(2):
            for j in range(2):
                acc = ACC + 16 * (2 * i + j); c = vr(acc, 16) if s else "0"
                A, B = vr(b + 4 * j, 4), vr(a0 + 4 * i, 4)
                if not act_is_B: A, B = B, A
                k.e(f"v_mfma_f32_32x32x16_bf16 {vr(acc,16)}, {A}, {B}, {c}")
        if s + D < n: gemm_issue(k, s + D, D, wrow)
    P.stamp()
    for x in range(1, 4):
        for q in range(4): k.e(f"ds_write_b128 v{15+x}, {vr(ACC+16*x+4*q,4)} offset:{q*1024}")
    k.e("s_waitcnt lgkmcnt(0)\ns_barrier")
    for x in range(3):
        for q in range(4): k.e(f"ds_read_b128 {vr(ACC+16+16*x+4*q,4)}, v19 offset:{x*4096+q*1024}")
    for x in range(3):
        for q in range(4):
            k.e(f"s_waitcnt lgkmcnt({11-4*x-q})")
            for e in range(4): k.e(f"v_add_f32 v{ACC+4*q+e}, v{ACC+4*q+e}, v{ACC+16+16*x+4*q+e}")
    P.stamp()
def div7(k, d, s): k.e(f"s_mul_i32 s{d}, s{s}, 147\ns_lshr_b32 s{d}, s{d}, 10")

def k3():
    k = Kern("proj_kernel", 224, 256, 65536 + 49152 + 8192, 208)
    P = Prof(k, 2)
    head(k, 224); P.start()
    k.e("s_load_dwordx2 s[4:5], s[0:1], 0\ns_load_dwordx2 s[6:7], s[0:1], 16\ns_load_dwordx2 s[8:9], s[0:1], 80")
    wave_lane(k)
    k.e("s_and_b32 s26, s2, 7\ns_lshr_b32 s27, s2, 3"); div7(k, 28, 27)
    k.e("""s_mul_i32 s29, s28, 7
    s_sub_u32 s10, s27, s29
    s_lshl_b32 s11, s26, 2
    s_add_u32 s11, s11, s28""")
    gemm_setup(k, 896, 32768, True)
    k.e(f"""s_mul_i32 s26, s3, {112*896}
    s_lshl_b32 s27, s10, 7
    s_add_u32 s26, s26, s27
    s_sub_u32 s27, 401408, s26
    s_lshl_b32 s28, s11, 16
    s_lshl_b32 s29, s3, 13
    s_add_u32 s28, s28, s29
    s_add_u32 s28, s28, {OF}
    s_lshl_b32 s38, s11, 1
    s_add_u32 s38, s38, s34
    s_lshl_b32 s39, s10, 1
    s_add_u32 s39, s39, s35
    s_mul_i32 s40, s38, 28672
    s_lshl_b32 s41, s39, 6
    s_add_u32 s40, s40, s41
    v_and_b32 v3, 31, v1
    v_lshrrev_b32 v4, 5, v1
    v_mul_u32_u24 v5, 896, v3
    v_lshl_add_u32 v5, v4, 3, v5
    s_waitcnt lgkmcnt(0)""")
    srd(k, 12, 6, "s27", "s26"); srd(k, 16, 8, 0x10000, "s28"); srd(k, 20, 8, WSZ); srd(k, 44, 4, 1835008)
    wrow = lambda s: (28 * (s >> 1) + 16 * (s & 1)) * 896
    for i in range(4): k.e(f"buffer_load_dwordx2 {vr(24+2*i,2)}, v5, s[44:47], s40 offen offset:{16*i}")
    for s in range(8): gemm_issue(k, s, 8, wrow)
    gemm_setup2(k, True)
    k.e(f"""s_mul_i32 s26, s38, 3584
    s_add_u32 s26, s26, {ST}
    s_lshl_b32 s27, s39, 8
    s_add_u32 s27, s27, s26
    v_and_b32 v3, 31, v1
    v_lshrrev_b32 v4, 5, v1
    v_lshlrev_b32 v20, 3, v3
    v_lshl_add_u32 v21, v4, 8, v20
    s_lshl_b32 s28, s3, 11
    s_add_u32 s28, s28, {65536+49152}
    v_lshlrev_b32 v22, 6, v3
    v_lshl_add_u32 v22, v4, 3, v22
    v_add_u32 v22, s28, v22
    v_bfe_u32 v5, v1, 2, 2
    v_lshl_add_u32 v5, v4, 3, v5
    v_lshlrev_b32 v5, 6, v5
    v_bfe_u32 v6, v1, 4, 1
    v_lshl_add_u32 v5, v6, 5, v5
    v_and_b32 v6, 3, v1
    v_lshl_add_u32 v5, v6, 3, v5
    v_add_u32 v23, s28, v5""")
    gemm_loop(k, 8, 8, wrow, True, True, P)
    for i in range(8):
        k.e(f"v_lshlrev_b32 v3, 16, v{24+i}\nv_and_b32 v4, 0xffff0000, v{24+i}\nv_add_f32 v{ACC+2*i}, v{ACC+2*i}, v3\nv_add_f32 v{ACC+2*i+1}, v{ACC+2*i+1}, v4")
    k.e(f"v_add_f32 v4, v{ACC}, v{ACC+1}\nv_mul_f32 v5, v{ACC}, v{ACC}\nv_fmac_f32 v5, v{ACC+1}, v{ACC+1}")
    for r in range(2, 16): k.e(f"v_add_f32 v4, v4, v{ACC+r}\nv_fmac_f32 v5, v{ACC+r}, v{ACC+r}")
    k.e("""v_mov_b32 v6, v4
    v_mov_b32 v7, v5
    v_permlane32_swap_b32 v4, v6
    v_permlane32_swap_b32 v5, v7
    v_add_f32 v4, v4, v6
    v_add_f32 v5, v5, v7
    v_or_b32 v5, 1, v5
    s_mov_b64 exec, 0xffffffff
    buffer_store_dwordx2 v[4:5], v20, s[20:23], s27 offen sc1
    s_mov_b64 exec, -1""")
    for r in range(8): k.e(f"v_cvt_pk_bf16_f32 v{24+r}, v{ACC+2*r}, v{ACC+2*r+1}")
    k.e(f"""s_mul_i32 s28, s38, 14
    s_add_u32 s28, s28, s39
    s_lshl_b32 s28, s28, 11
    s_add_u32 s28, s28, {HF}
    buffer_store_dwordx4 v[24:27], v2, s[20:23], s28 offen
    buffer_store_dwordx4 v[28:31], v2, s[20:23], s28 offen offset:1024
    s_mov_b32 s29, 0""")
    P.stamp()
    lp, dn = k.lab("poll"), k.lab("got")
    k.e(f"{lp}:")
    for n in range(7): k.e(f"buffer_load_dwordx2 {vr(32+2*n,2)}, v21, s[20:23], s26 offen offset:{512*n} sc1")
    k.e(f"""s_add_u32 s29, s29, 1
    s_waitcnt vmcnt(0)
    v_min3_u32 v3, v33, v35, v37
    v_min3_u32 v3, v3, v39, v41
    v_min3_u32 v3, v3, v43, v45
    v_cmp_eq_u32 vcc, 0, v3
    s_cmp_gt_u32 s29, 100000
    s_cbranch_scc1 {dn}
    s_cbranch_vccnz {lp}
    {dn}:""")
    P.stamp()
    for n in range(1, 7): k.e(f"v_add_f32 v32, v32, v{32+2*n}\nv_add_f32 v33, v33, v{33+2*n}")
    k.e(f"""v_mov_b32 v6, v32
    v_mov_b32 v7, v33
    v_permlane32_swap_b32 v32, v6
    v_permlane32_swap_b32 v33, v7
    v_add_f32 v4, v32, v6
    v_add_f32 v5, v33, v7
    v_mul_f32 v4, {hx(1/448)}, v4
    v_mul_f32 v5, {hx(1/448)}, v5
    v_fma_f32 v5, -v4, v4, v5
    v_max_f32 v5, 0, v5
    v_add_f32 v6, {hx(1e-5)}, v5
    v_rsq_f32 v6, v6
    s_nop 0
    v_mul_f32 v5, v5, v6
    v_mul_f32 v5, v5, v6
    v_add_f32 v5, {hx(1e-5)}, v5
    v_rsq_f32 v5, v5
    s_nop 0
    v_mul_f32 v5, v5, v6
    v_mul_f32 v4, v4, v5""")
    for r in range(16): k.e(f"v_fma_f32 v{ACC+r}, v{ACC+r}, v5, -v4")
    for r in range(8): k.e(f"v_cvt_pk_bf16_f32 v{32+r}, v{ACC+2*r}, v{ACC+2*r+1}")
    for i in range(4): k.e(f"ds_write_b64 v22, {vr(32+2*i,2)} offset:{16*i}")
    k.e(f"""s_lshl_b32 s28, s39, 7
    s_lshl_b32 s29, s38, 1
    s_add_u32 s28, s28, s29
    s_lshl_b32 s28, s28, 10
    s_add_u32 s28, s28, {HHF}
    s_waitcnt lgkmcnt(0)""")
    for t in range(2):
        for rd in range(2): k.e(f"ds_read_b64_tr_b16 {vr(40+4*t+2*rd,2)}, v23 offset:{1024*t+256*rd}")
    k.e("s_waitcnt lgkmcnt(2)\nbuffer_store_dwordx4 v[40:43], v2, s[20:23], s28 offen\ns_waitcnt lgkmcnt(0)\nbuffer_store_dwordx4 v[44:47], v2, s[20:23], s28 offen offset:1024")
    P.stamp(); P.flush(20)
    tail(k)
    return k

def k4():
    k = Kern("mix1_kernel", 196, 256, 65536 + 49152, 208)
    P = Prof(k, 3)
    head(k, 196); P.start()
    k.e("s_load_dwordx4 s[4:7], s[0:1], 32\ns_load_dwordx2 s[8:9], s[0:1], 80")
    wave_lane(k)
    k.e("""s_and_b32 s26, s2, 7
    s_lshr_b32 s27, s2, 3
    s_min_u32 s28, s26, 4
    s_mul_i32 s26, s26, 24
    s_add_u32 s26, s26, s28
    s_add_u32 s27, s27, s26""")
    div7(k, 11, 27)
    k.e("s_mul_i32 s29, s11, 7\ns_sub_u32 s10, s27, s29")
    gemm_setup(k, 3584, 131072, False)
    k.e(f"""s_mul_i32 s26, s3, {512*3584}
    s_lshl_b32 s27, s11, 7
    s_add_u32 s26, s26, s27
    s_sub_u32 s27, 7340032, s26
    s_lshl_b32 s28, s10, 18
    s_lshl_b32 s29, s3, 15
    s_add_u32 s28, s28, s29
    s_add_u32 s28, s28, {HHF}
    s_lshl_b32 s38, s10, 1
    s_add_u32 s38, s38, s34
    s_lshl_b32 s39, s11, 1
    s_add_u32 s39, s39, s35
    s_lshl_b32 s40, s39, 6
    v_lshrrev_b32 v4, 5, v1
    v_lshlrev_b32 v5, 3, v4
    s_waitcnt lgkmcnt(0)""")
    srd(k, 12, 4, "s27", "s26"); srd(k, 16, 8, 0x40000, "s28"); srd(k, 20, 8, WSZ); srd(k, 44, 6, 3584)
    wrow = lambda s: s * 16 * 3584
    for i in range(4): k.e(f"buffer_load_dwordx2 {vr(24+2*i,2)}, v5, s[44:47], s40 offen offset:{16*i}")
    for s in range(8): gemm_issue(k, s, 8, wrow)
    gemm_setup2(k, False)
    gemm_loop(k, 32, 8, wrow, False, True, P)
    k0 = -2 * math.log2(math.e) * math.sqrt(2 / math.pi); k1 = k0 * 0.044715
    k.e(f"""v_mov_b32 v20, {hx(k1)}
    s_mul_i32 s28, s38, 56
    s_add_u32 s28, s28, s39
    s_lshl_b32 s28, s28, 11
    s_add_u32 s28, s28, {UF}""")
    for i in range(8):
        k.e(f"v_lshlrev_b32 v3, 16, v{24+i}\nv_and_b32 v4, 0xffff0000, v{24+i}\nv_add_f32 v{ACC+2*i}, v{ACC+2*i}, v3\nv_add_f32 v{ACC+2*i+1}, v{ACC+2*i+1}, v4")
    T = 32
    for g in range(4):
        R = range(4 * g, 4 * g + 4)
        for r in R: k.e(f"v_mul_f32 v{T+r}, v{ACC+r}, v{ACC+r}")
        for r in R: k.e(f"v_fmaak_f32 v{T+r}, v{T+r}, v20, {hx(k0)}")
        for r in R: k.e(f"v_mul_f32 v{T+r}, v{T+r}, v{ACC+r}")
        for r in R: k.e(f"v_exp_f32 v{T+r}, v{T+r}")
        for r in R: k.e(f"v_add_f32 v{T+r}, 1.0, v{T+r}")
        for r in R: k.e(f"v_rcp_f32 v{T+r}, v{T+r}")
        for r in R: k.e(f"v_mul_f32 v{T+r}, v{T+r}, v{ACC+r}")
        for r in (2 * g, 2 * g + 1): k.e(f"v_cvt_pk_bf16_f32 v{48+r}, v{T+2*r}, v{T+2*r+1}")
        if g & 1: k.e(f"buffer_store_dwordx4 {vr(48+2*g-2,4)}, v2, s[20:23], s28 offen offset:{(g>>1)*1024}")
    P.stamp(); P.flush(20)
    tail(k)
    return k

def k5():
    k = Kern(MAIN + "_kernel", 224, 256, 65536 + 49152, 208)
    P = Prof(k, 4)
    head(k, 224); P.start()
    k.e("s_load_dwordx4 s[4:7], s[0:1], 48\ns_load_dwordx2 s[42:43], s[0:1], 64\ns_load_dwordx2 s[8:9], s[0:1], 80")
    wave_lane(k)
    k.e("s_and_b32 s26, s2, 7\ns_lshr_b32 s27, s2, 3"); div7(k, 28, 27)
    k.e("""s_mul_i32 s29, s28, 7
    s_sub_u32 s10, s27, s29
    s_lshl_b32 s11, s26, 2
    s_add_u32 s11, s11, s28""")
    gemm_setup(k, 4096, 114688, True)
    k.e(f"""s_mul_i32 s26, s3, {448*4096}
    s_lshl_b32 s27, s11, 7
    s_add_u32 s26, s26, s27
    s_sub_u32 s27, 7340032, s26
    s_mul_i32 s28, s10, {2*114688}
    s_mul_i32 s29, s3, {28*1024}
    s_add_u32 s28, s28, s29
    s_add_u32 s28, s28, {UF}
    s_lshl_b32 s38, s10, 1
    s_add_u32 s38, s38, s34
    s_lshl_b32 s39, s11, 1
    s_add_u32 s39, s39, s35
    s_mul_i32 s40, s39, 14
    s_add_u32 s40, s40, s38
    s_lshl_b32 s40, s40, 11
    s_add_u32 s40, s40, {HF}
    s_lshl_b32 s41, s39, 6
    v_and_b32 v3, 31, v1
    v_lshlrev_b32 v5, 1, v3
    s_waitcnt lgkmcnt(0)""")
    srd(k, 12, 4, "s27", "s26"); srd(k, 16, 8, 2 * 114688, "s28"); srd(k, 20, 8, WSZ); srd(k, 44, 6, 4096); srd(k, 48, 42, 1835008)
    wrow = lambda s: s * 16 * 4096
    k.e("buffer_load_ushort v32, v5, s[44:47], s41 offen\nbuffer_load_dwordx4 v[24:27], v2, s[20:23], s40 offen\nbuffer_load_dwordx4 v[28:31], v2, s[20:23], s40 offen offset:1024")
    for s in range(8): gemm_issue(k, s, 8, wrow)
    gemm_setup2(k, True)
    k.e("""v_and_b32 v3, 31, v1
    v_lshrrev_b32 v4, 5, v1
    v_mul_u32_u24 v20, 896, v3
    v_lshl_add_u32 v20, v4, 4, v20
    s_mul_i32 s28, s39, 28672
    s_lshl_b32 s29, s38, 6
    s_add_u32 s28, s28, s29""")
    gemm_loop(k, 28, 8, wrow, True, False, P)
    k.e("v_lshlrev_b32 v32, 16, v32")
    for i in range(8):
        k.e(f"""v_lshlrev_b32 v3, 16, v{24+i}
        v_and_b32 v4, 0xffff0000, v{24+i}
        v_add_f32 v3, v3, v32
        v_add_f32 v4, v4, v32
        v_add_f32 v{ACC+2*i}, v{ACC+2*i}, v3
        v_add_f32 v{ACC+2*i+1}, v{ACC+2*i+1}, v4
        v_cvt_pk_bf16_f32 v{40+i}, v{ACC+2*i}, v{ACC+2*i+1}""")
    for g in range(2):
        k.e(f"v_permlane32_swap_b32 v{40+4*g}, v{42+4*g}\nv_permlane32_swap_b32 v{41+4*g}, v{43+4*g}")
        k.e(f"buffer_store_dwordx4 {vr(40+4*g,4)}, v20, s[48:51], s28 offen offset:{32*g}")
    P.stamp(); P.flush(20)
    tail(k)
    return k

if __name__ == "__main__":
    ks = [k1(), k2(), k3(), k4(), k5()]
    t = build(ks)
    assemble(t, "v1p" if PROF else "v1", ks)
    if "install" in sys.argv:
        open(f"cdna_kernels/{MAIN}.s", "w").write(t)
    print(len(t), "bytes")
```

```python
import sys, struct, math
from asmlib import *
KVF, OF, HF, HHF, UF, ST, TS = 0x200000, 0x600000, 0x800000, 0xA00000, 0xC00000, 0xE00000, 0xF00000
FA, FB, FC, FD, NONCE = 0x100000, 0x101000, 0x102000, 0x103000, 0x10400C
WSZ = 0x1000000
PROF = "prof" in sys.argv
def f2u(x): return struct.unpack("<I", struct.pack("<f", x))[0]
def hx(x): return hex(f2u(x))
def vr(a, n): return f"v[{a}:{a+n-1}]"
def ar(a, n): return f"a[{a}:{a+n-1}]"
def sr(a, n): return f"s[{a}:{a+n-1}]"
WS, S1, S2, SW = "s[32:35]", "s[36:39]", "s[40:43]", "s[44:47]"

class K(Kern):
    def __init__(s, *a, **kw):
        super().__init__(*a, **kw); s.vi = s.vd = s.li = s.ld = 0; s.pend = None
    def vm(s, t):
        for l in t.split("\n"):
            if l.strip(): s.e(l); s.vi += l.strip().startswith("buffer_")
        assert s.vi - s.vd <= 63, "vmcnt overflow"
        return s.vi
    def ds(s, t):
        for l in t.split("\n"):
            if l.strip(): s.e(l); s.li += l.strip().startswith("ds_")
        return s.li
    def w(s, v=None, l=None):
        o = []
        if v is not None and v > s.vd: o.append(f"vmcnt({s.vi - v})"); s.vd = v
        if l is not None and l > s.ld:
            n = min(s.li - l, 15); o.append(f"lgkmcnt({n})"); s.ld = s.li - n
        if o: s.e("s_waitcnt " + " ".join(o))
    def wall(s, v=True, l=True):
        s.e("s_waitcnt " + ("vmcnt(0) " if v else "") + ("lgkmcnt(0)" if l else ""))
        if v: s.vd = s.vi
        if l: s.ld = s.li
    def srd(s, d, p, size, offs=None):
        d = int(d[2:d.index(":")])
        if offs is None: s.e(f"s_mov_b32 s{d}, s{p}\ns_mov_b32 s{d+1}, s{p+1}")
        else: s.e(f"s_add_u32 s{d}, s{p}, {offs}\ns_addc_u32 s{d+1}, s{p+1}, 0")
        s.e(f"s_mov_b32 s{d+2}, {size}\ns_mov_b32 s{d+3}, 0x20000")
    def stamp(s, n):
        if not PROF: return
        if s.pend is not None: s.e(f"v_writelane_b32 v255, s100, {s.pend}")
        s.e("s_memtime s[100:101]"); s.pend = n
    def commit(s):
        if PROF and s.pend is not None:
            s.e(f"s_waitcnt lgkmcnt(0)\nv_writelane_b32 v255, s100, {s.pend}"); s.pend = None; s.ld = s.li
    def poll(s, vaddr, soff):
        lp, dn = s.lab("poll"), s.lab("got")
        s.e(f"""s_mov_b32 s98, 0
        {lp}:
        buffer_load_dword v3, v{vaddr}, {WS}, {soff} offen sc1
        s_add_u32 s98, s98, 1
        s_waitcnt vmcnt(0)
        v_cmp_ne_u32 vcc, s26, v3
        s_cmp_gt_u32 s98, 30000
        s_cbranch_scc1 {dn}
        s_cbranch_vccnz {lp}
        {dn}:""")
        s.vd = s.vi
    def flag(s, soff):
        s.e("v_mov_b32 v3, s26\nv_mov_b32 v4, 0\ns_mov_b64 exec, 1")
        s.vm(f"buffer_store_dword v3, v4, {WS}, {soff} offen sc1")
        s.e("s_mov_b64 exec, -1")

def wdma_addr(k, d, stride):
    k.e(f"""v_lshrrev_b32 v3, 3, v1
    v_mul_u32_u24 v3, {stride}, v3
    v_and_b32 v4, 7, v1
    v_bfe_u32 v5, v1, 4, 1
    v_lshlrev_b32 v5, 2, v5
    v_xor_b32 v4, v4, v5
    v_lshl_add_u32 v{d}, v4, 4, v3
    v_add_u32 v{d+1}, {8*stride-1024}, v{d}""")
def wtr_addr(k, d, perm, sbase, sflip):
    k.e(f"""v_lshrrev_b32 v3, 5, v1
    v_bfe_u32 v4, v1, 2, 2
    v_lshl_add_u32 v4, v3, {2 if perm else 3}, v4
    v_lshlrev_b32 v4, 7, v4
    v_bfe_u32 v5, v1, 4, 1
    v_lshl_add_u32 v4, v5, 5, v4
    v_and_b32 v5, 3, v1
    v_lshl_add_u32 v4, v5, 3, v4
    v_add_u32 v4, {sbase}, v4
    v_bfe_u32 v5, v1, 3, 1
    v_xor_b32 v5, {sflip}, v5
    v_lshl_add_u32 v{d}, v5, 6, v4
    v_xor_b32 v5, 1, v5
    v_lshl_add_u32 v{d+1}, v5, 6, v4""")
def wdma(k, srd_, va, sbase, slot, goff):
    k.e(f"s_add_u32 m0, {sbase}, {slot*2048}\ns_mov_b32 s48, {goff}")
    return k.vm(f"buffer_load_dwordx4 v{va}, {srd_}, s48 offen lds\nbuffer_load_dwordx4 v{va+1}, {srd_}, s48 offen offset:1024 lds")
def wdrain(k, dst, va, slot, perm):
    for j in range(2):
        for rd in range(2):
            t = k.ds(f"ds_read_b64_tr_b16 {dst(j, rd)}, v{va+j} offset:{slot*2048 + rd*(1024 if perm else 512)}")
    return t
PB, TA, TB_, WD, B1R, B2R = 114688, 240, 242, 244, 246, 254
class W1:
    def __init__(s, k): s.k = k; s.tok = {}; s.slot = {}
    def issue(s, st, reg, n):
        s.slot[st] = (reg, n)
        s.tok[st] = wdma(s.k, SW, WD, "s96" if reg == "P" else "s97", n, st * 16 * 3584)
    def drain(s, st):
        reg, n = s.slot[st]; s.k.w(v=s.tok[st])
        return wdrain(s.k, lambda j, rd: ar(8 * st + 4 * j + 2 * rd, 2), TA if reg == "P" else TB_, n, False)

def prologue(k):
    k.e(f"s_cmp_ge_u32 s2, 256\ns_cbranch_scc1 {k.name}_end")
    if PROF: k.e("s_memrealtime s[98:99]\nv_mov_b32 v255, 0")
    k.stamp(0)
    k.e("""s_load_dwordx16 s[4:19], s[0:1], 0
    s_load_dwordx4 s[20:23], s[0:1], 64
    s_load_dwordx2 s[24:25], s[0:1], 80
    v_lshrrev_b32 v2, 6, v0
    v_and_b32 v1, 63, v0
    v_readfirstlane_b32 s3, v2
    v_lshlrev_b32 v2, 4, v1
    s_and_b32 s27, s2, 7
    s_lshr_b32 s28, s2, 3
    s_lshr_b32 s29, s28, 1
    s_and_b32 s30, s28, 1
    s_lshl_b32 s48, s27, 1
    s_add_u32 s30, s30, s48
    s_lshl_b32 s31, s30, 2
    s_add_u32 s31, s31, s3""")

def phaseA(k, w1):
    WB, CS, SCR = 65536, 160256, 161792
    XA, WA, XR, WR, FB_, AQ, AK, AV, SS, CA, ON = 10, 14, 16, 20, 32, 64, 80, 96, 112, 120, 132
    k.e("""v_lshrrev_b32 v3, 3, v1
    v_mul_u32_u24 v3, 896, v3
    v_and_b32 v4, 7, v1
    v_lshrrev_b32 v5, 4, v1
    v_xor_b32 v4, v4, v5
    v_lshl_add_u32 v10, v4, 4, v3
    v_xor_b32 v4, 4, v4
    v_lshl_add_u32 v11, v4, 4, v3
    v_add_u32 v12, 12288, v10
    v_add_u32 v13, 18432, v11
    v_add_u32 v11, 6144, v11
    v_lshrrev_b32 v3, 2, v1
    v_mul_u32_u24 v3, 2688, v3
    v_and_b32 v4, 3, v1
    v_lshl_add_u32 v14, v4, 4, v3
    s_mul_i32 s50, s31, 28672
    s_mul_i32 s51, s29, 56
    s_sub_u32 s52, 1204224, s51
    s_lshl_b32 s97, s3, 14
    s_mul_i32 s53, s3, 3264
    s_mul_i32 s54, s3, 43008
    s_waitcnt lgkmcnt(0)""")
    if PROF: k.e("v_writelane_b32 v255, s98, 30")
    k.srd(S1, 4, 28672, "s50"); k.srd(S2, 6, "s52", "s51")
    tok = {}
    def dma(c):
        k.e(f"s_add_u32 m0, s97, {(c&3)*4096}\ns_movk_i32 s48, {c*128}")
        for q in range(4): k.vm(f"buffer_load_dwordx4 v{XA+q}, {S1}, s48 offen offset:{q*1024} lds")
        for t in range(3):
            k.e(f"s_add_u32 m0, s53, {WB + c*13056 + t*1088}\ns_add_u32 s49, s54, {c*172032 + t*896}")
            tok[c] = k.vm(f"buffer_load_dwordx4 v{WA}, {S2}, s49 offen lds")
    for c in range(4): dma(c)
    k.stamp(1)
    k.e(f"s_add_u32 s10, s24, {NONCE}\ns_addc_u32 s11, s25, 0\ns_load_dword s26, s[10:11], 0")
    k.srd(WS, 24, WSZ)
    k.e(f"""v_cmp_gt_u32 vcc, 84, v0
    s_and_saveexec_b64 s[56:57], vcc
    v_mul_u32_u24 v8, 171, v0
    v_lshrrev_b32 v8, 9, v8
    v_mul_u32_u24 v8, 3, v8
    v_cmp_eq_u32 vcc, v8, v0
    v_mov_b32 v9, 0x3f80
    v_cndmask_b32 v8, 0, v9, vcc
    v_mov_b32 v9, 0
    v_mul_u32_u24 v7, 1088, v0
    v_add_u32 v7, {WB + 1080}, v7
    ds_write_b64 v7, v[8:9]
    s_mov_b64 exec, s[56:57]
    v_and_b32 v7, 31, v1
    v_lshrrev_b32 v3, 5, v1
    v_lshrrev_b32 v4, 1, v7
    v_and_b32 v4, 7, v4
    v_xor_b32 v4, v4, v3
    s_lshl_b32 s48, s3, 1
    v_xor_b32 v4, s48, v4
    v_lshlrev_b32 v5, 7, v7
    v_add_u32 v5, s97, v5""")
    for j in range(4): k.e(f"v_xor_b32 v6, {2*j}, v4\nv_lshl_add_u32 v{XR+j}, v6, 4, v5")
    k.e(f"""v_bfe_u32 v4, v1, 2, 2
    v_lshl_add_u32 v4, v3, 3, v4
    v_lshlrev_b32 v4, 6, v4
    v_bfe_u32 v5, v1, 4, 1
    v_lshl_add_u32 v4, v5, 5, v4
    v_and_b32 v6, 3, v1
    v_lshl_add_u32 v4, v6, 3, v4
    v_add_u32 v7, 256, v4
    v_and_b32 v6, 19, v1
    v_cmp_eq_u32 vcc, 19, v6
    v_mov_b32 v6, 1080
    v_cndmask_b32 v4, v4, v6, vcc
    v_cndmask_b32 v7, v7, v6, vcc""")
    for j in range(4):
        k.e(f"s_xor_b32 s48, s3, {j}\ns_mul_i32 s48, s48, 3264\ns_add_u32 s48, s48, {WB}")
        k.e(f"v_add_u32 v{WR+2*j}, s48, v4\nv_add_u32 v{WR+2*j+1}, s48, v7")
    k.e(f"v_mov_b32 v{ON}, 0x3f803f80\nv_mov_b32 v{ON+1}, 0x3f803f80")
    k.e(f"""s_and_b32 s50, s27, 1
    s_lshr_b32 s23, s27, 1
    s_mul_i32 s51, s28, 86
    s_lshr_b32 s51, s51, 8
    s_lshr_b32 s52, s28, 2
    s_cmp_eq_u32 s50, 0
    s_cselect_b32 s60, s52, s51
    s_sub_u32 s51, 4, s50
    s_mul_i32 s51, s51, s60
    s_sub_u32 s22, s28, s51
    s_lshl_b32 s51, s50, 2
    s_add_u32 s22, s22, s51
    s_mul_i32 s96, s3, 10240
    s_add_u32 s96, s96, {PB}
    s_and_b32 s55, s3, 1
    s_waitcnt lgkmcnt(0)
    s_mov_b32 s10, s60
    s_lshr_b32 s51, s26, 16
    s_add_u32 s51, s51, 0x1357
    s_and_b32 s51, s51, 0x3fff
    s_add_u32 s26, s26, 0x79b9
    s_and_b32 s26, s26, 0xffff
    s_lshl_b32 s51, s51, 16
    s_or_b32 s26, s26, s51""")
    wdma_addr(k, WD, 3584); wtr_addr(k, TA, False, "s96", "s55"); wtr_addr(k, TB_, False, "s97", "s55")
    def touches():
        k.e("""s_mul_i32 s50, s23, 7
        s_add_u32 s50, s50, s10
        s_lshl_b32 s51, s50, 1
        s_add_u32 s51, s51, s55
        s_lshl_b32 s51, s51, 6
        v_lshrrev_b32 v3, 5, v1
        v_lshlrev_b32 v3, 3, v3""")
        k.srd(SW, 14, 3584)
        for i in range(4): k.vm(f"buffer_load_dwordx2 {vr(B1R+2*i,2)}, v3, {SW}, s51 offen offset:{16*i}")
        k.e("""s_lshl_b32 s51, s23, 3
        s_add_u32 s51, s51, s10
        s_lshl_b32 s51, s51, 1
        s_add_u32 s51, s51, s55
        s_lshl_b32 s51, s51, 6
        v_and_b32 v3, 31, v1
        v_lshlrev_b32 v3, 1, v3""")
        k.srd(SW, 18, 4096)
        k.vm(f"buffer_load_ushort v{B2R}, v3, {SW}, s51 offen")
        k.srd(SW, 8, 401408)
        k.e("s_lshl_b32 s51, s2, 2\ns_add_u32 s51, s51, s3\ns_lshl_b32 s51, s51, 10")
        k.vm(f"buffer_load_dwordx4 v[136:139], v2, {SW}, s51 offen")
        k.e("""s_and_b32 s51, s27, 1
        s_lshl_b32 s51, s51, 5
        s_add_u32 s51, s51, s28
        s_lshl_b32 s51, s51, 2
        s_add_u32 s51, s51, s3
        s_lshr_b32 s52, s51, 6
        s_lshl_b32 s52, s52, 4
        s_bfe_u32 s56, s51, 0x20004
        s_lshl_b32 s56, s56, 9
        s_add_u32 s52, s52, s56
        s_and_b32 s51, s51, 15
        s_add_u32 s52, s52, s51
        s_mul_i32 s52, s52, 3584
        s_mul_i32 s51, s23, 896
        s_add_u32 s52, s52, s51
        v_cmp_gt_u32 vcc, 56, v1
        v_mov_b32 v3, 0x7fffffff
        v_cndmask_b32 v3, v3, v2, vcc""")
        k.srd(SW, 12, 7340032)
        for j in range(8):
            k.vm(f"buffer_load_dwordx4 v[136:139], v3, {SW}, s52 offen")
            if j < 7: k.e(f"s_add_u32 s52, s52, {64*3584}")
        k.e(f"""s_mul_i32 s51, s3, {512*3584}
        s_lshl_b32 s50, s50, 7
        s_add_u32 s51, s51, s50
        s_sub_u32 s52, 7340032, s51
        s_cmp_lt_u32 s10, 7
        s_cselect_b32 s52, s52, 0
        s_cselect_b32 s51, s51, 0""")
        k.srd(SW, 12, "s52", "s51")
    def reads(g):
        c, j = g >> 2, g & 3; b = FB_ + 16 * (g & 1)
        k.e(f"ds_read_b128 {vr(b,4)}, v{XR+j} offset:{(c&3)*4096}")
        for t in range(3):
            for rd in range(2):
                k.e(f"ds_read_b64_tr_b16 {vr(b+4+4*t+2*rd,2)}, v{WR+2*j+rd} offset:{(c&3)*13056 + t*1088}")
    k.w(v=tok[0]); k.e("s_waitcnt lgkmcnt(0)\ns_barrier")
    k.stamp(2)
    reads(0)
    for g in range(28):
        c, j = g >> 2, g & 3; b = FB_ + 16 * (g & 1)
        if g + 1 < 28:
            if j == 3:
                k.w(v=tok[c + 1]); k.e("s_barrier")
                if c == 3:
                    for i in range(8): k.e(f"v_add_u32 v{WR+i}, {4*13056}, v{WR+i}")
            reads(g + 1)
            k.e("s_waitcnt lgkmcnt(7)")
        else: k.e("s_waitcnt lgkmcnt(0)")
        z = lambda a, n: vr(a, n) if g else "0"
        k.e(f"v_mfma_f32_32x32x16_bf16 {vr(AQ,16)}, {vr(b+4,4)}, {vr(b,4)}, {z(AQ,16)}")
        k.e(f"v_mfma_f32_4x4x4_16b_bf16 {vr(SS,4)}, {vr(b,2)}, {vr(b,2)}, {z(SS,4)}")
        k.e(f"v_mfma_f32_32x32x16_bf16 {vr(AK,16)}, {vr(b+8,4)}, {vr(b,4)}, {z(AK,16)}")
        k.e(f"v_mfma_f32_4x4x4_16b_bf16 {vr(SS+4,4)}, {vr(b+2,2)}, {vr(b+2,2)}, {z(SS+4,4)}")
        k.e(f"v_mfma_f32_32x32x16_bf16 {vr(AV,16)}, {vr(b,4)}, {vr(b+12,4)}, {z(AV,16)}")
        if j == 0:
            for hlf in range(2):
                for t in range(3):
                    cc = vr(CA+4*t, 4) if (g or hlf) else "0"
                    k.e(f"v_mfma_f32_4x4x4_16b_bf16 {vr(CA+4*t,4)}, {vr(ON,2)}, {vr(b+4+4*t+2*hlf,2)}, {cc}")
        if j == 3 and c + 4 < 7: dma(c + 4)
        if g == 12: touches()
    k.stamp(3)
    k.e(f"""v_and_b32 v7, 31, v1
    v_lshlrev_b32 v3, 4, v7
    s_lshl_b32 s48, s3, 2
    v_add_u32 v4, s48, v3
    v_add_u32 v4, {CS}, v4
    v_add_u32 v3, {CS}, v3
    s_lshl_b32 s48, s3, 9
    s_add_u32 s48, s48, {SCR}
    v_lshl_add_u32 v5, v7, 2, s48
    v_lshrrev_b32 v6, 5, v1
    v_lshl_add_u32 v6, v6, 4, s48""")
    for t in range(3): k.e(f"v_mov_b32 v{CA+4*t+1}, v{CA+4*t}")
    for t in range(3): k.e(f"v_permlane32_swap_b32 v{CA+4*t}, v{CA+4*t+1}")
    for t in range(3): k.e(f"v_add_f32 v{CA+4*t}, v{CA+4*t}, v{CA+4*t+1}\nds_write_b32 v4, v{CA+4*t} offset:{512*t}")
    for i in range(4): k.e(f"v_add_f32 v{SS+i}, v{SS+i}, v{SS+4+i}")
    k.e(f"""v_and_b32 v7, 3, v1
    v_cmp_eq_u32 vcc, 1, v7
    v_cmp_eq_u32 s[56:57], 2, v7
    v_cmp_eq_u32 s[58:59], 3, v7
    v_cndmask_b32 v{SS}, v{SS}, v{SS+1}, vcc
    v_cndmask_b32 v{SS}, v{SS}, v{SS+2}, s[56:57]
    v_cndmask_b32 v{SS}, v{SS}, v{SS+3}, s[58:59]
    v_mov_b32 v8, v{AQ+12}
    v_mov_b32 v9, v{AQ+12}
    v_mov_b32 v{SS+1}, v{SS}
    s_waitcnt lgkmcnt(0)
    s_barrier
    ds_read_b128 v[32:35], v3
    ds_read_b128 v[36:39], v3 offset:512
    ds_read_b128 v[40:43], v3 offset:1024
    v_permlane32_swap_b32 v8, v9
    v_permlane32_swap_b32 v{SS}, v{SS+1}
    v_mul_f32 v9, {hx(1/448)}, v9
    v_add_f32 v8, v{SS}, v{SS+1}
    v_mul_f32 v8, {hx(1/448)}, v8
    v_fma_f32 v8, -v9, v9, v8
    v_max_f32 v8, 0, v8
    v_add_f32 v8, {hx(1e-5)}, v8
    v_rsq_f32 v8, v8
    s_nop 0
    v_mul_f32 v7, v8, v9
    ds_write_b32 v5, v8 offset:256
    ds_write_b32 v5, v7 offset:384
    s_waitcnt lgkmcnt(2)""")
    for t in range(3):
        b = 32 + 4 * t
        k.e(f"v_add_f32 v{b}, v{b}, v{b+1}\nv_add_f32 v{b+2}, v{b+2}, v{b+3}\nv_add_f32 v{b}, v{b}, v{b+2}")
    k.e("ds_write_b32 v5, v32\nds_write_b32 v5, v36 offset:128\ns_waitcnt lgkmcnt(0)")
    TB = 144
    for a, o in ((0, 128), (1, 256), (2, 384), (3, 0)):
        for i in range(4): k.e(f"ds_read_b128 {vr(TB+16*a+4*i,4)}, v6 offset:{o+32*i}")
    cq = 28 ** -0.5 * math.log2(math.e)
    k.e(f"""v_mul_f32 v7, {hx(cq)}, v8
    s_lshl_b32 s50, s29, 6
    s_add_u32 s50, s50, s31
    s_lshl_b32 s51, s50, 12
    s_add_u32 s51, s51, {KVF}
    s_lshl_b32 s50, s50, 2
    s_add_u32 s50, s50, {FA}
    s_lshl_b32 s48, s3, 12
    s_add_u32 s48, s48, {65536+32768}
    v_add_u32 v4, s48, v2
    v_and_b32 v3, 31, v1
    v_cmp_eq_u32 vcc, 28, v3
    v_mov_b32 v3, 0x3f803f80
    s_waitcnt lgkmcnt(12)""")
    for r in range(16): k.e(f"v_fma_f32 v{AK+r}, -v9, v{TB+r}, v{AK+r}")
    for r in range(16): k.e(f"v_mul_f32 v{AK+r}, v8, v{AK+r}")
    for r in range(8): k.e(f"v_cvt_pk_bf16_f32 v{52+r}, v{AK+2*r}, v{AK+2*r+1}")
    k.vm(f"buffer_store_dwordx4 v[52:55], v2, {WS}, s51 offen sc1\nbuffer_store_dwordx4 v[56:59], v2, {WS}, s51 offen offset:1024 sc1")
    k.e("s_waitcnt lgkmcnt(4)")
    for r in range(16): k.e(f"v_mul_f32 v{AV+r}, v{TB+16+r}, v{AV+r}")
    for r in range(16): k.e(f"v_fma_f32 v{AV+r}, -v{TB+32+r}, v40, v{AV+r}")
    for r in range(8): k.e(f"v_cvt_pk_bf16_f32 v{44+r}, v{AV+2*r}, v{AV+2*r+1}")
    for r in range(8): k.e(f"v_cndmask_b32 v{44+r}, v{44+r}, v3, vcc")
    tkv = k.vm(f"buffer_store_dwordx4 v[44:47], v2, {WS}, s51 offen offset:2048 sc1\nbuffer_store_dwordx4 v[48:51], v2, {WS}, s51 offen offset:3072 sc1")
    k.stamp(4)
    for s in range(5): w1.issue(s, "P", s)
    k.e("ds_write_b128 v4, v[52:55]\nds_write_b128 v4, v[56:59] offset:1024\nds_write_b128 v4, v[44:47] offset:2048\nds_write_b128 v4, v[48:51] offset:3072\ns_waitcnt lgkmcnt(4)")
    for r in range(16): k.e(f"v_fma_f32 v{AQ+r}, -v9, v{TB+48+r}, v{AQ+r}")
    for r in range(16): k.e(f"v_mul_f32 v{AQ+r}, v7, v{AQ+r}")
    for r in range(8): k.e(f"v_cvt_pk_bf16_f32 v{208+r}, v{AQ+2*r}, v{AQ+2*r+1}")
    k.w(v=tkv); k.flag("s50")
    k.stamp(5)
```

```python
from g2a import *
def phaseB(k, w1):
    Q, KB, VB, PK, PF, MK, OA, S = 208, 16, 32, 48, 56, 216, 224, 64
    k.e(f"""s_mul_i32 s62, s28, 147
    s_lshr_b32 s62, s62, 10
    s_mul_i32 s60, s62, 7
    s_sub_u32 s60, s28, s60
    s_lshl_b32 s61, s27, 2
    s_add_u32 s61, s61, s62
    s_mul_i32 s50, s3, {112*896}
    s_lshl_b32 s51, s60, 7
    s_add_u32 s50, s50, s51
    s_sub_u32 s51, 401408, s50""")
    k.srd(S1, 8, "s51", "s50")
    wdma_addr(k, 10, 896)
    for n in range(8): wdma(k, S1, 10, "s97", n, (28 * (n >> 1) + 16 * (n & 1)) * 896)
    k.e(f"""s_lshl_b32 s50, s29, 18
    s_add_u32 s50, s50, {KVF}
    s_lshl_b32 s51, s30, 2
    s_lshl_b32 s52, s3, 1
    s_add_u32 s51, s51, s52
    s_sub_u32 s51, s51, 8
    s_lshl_b32 s52, s51, 12
    v_add_u32 v5, s52, v2
    v_add_u32 v6, 4096, v5
    s_lshl_b32 s52, s29, 6
    s_add_u32 s52, s52, s51
    s_lshl_b32 s52, s52, 2
    s_add_u32 s52, s52, {FA}
    v_and_b32 v8, 1, v1
    v_lshlrev_b32 v8, 2, v8
    v_and_b32 v9, 31, v1
    v_lshrrev_b32 v7, 5, v1
    v_lshlrev_b32 v7, 2, v7
    v_sub_u32 v9, v9, v7
    s_sub_u32 s63, 8, s31
    s_max_i32 s63, s63, 0
    s_lshl_b32 s53, s3, 12
    s_add_u32 s53, s53, 65536
    v_add_u32 v7, s53, v2
    s_lshl_b32 s53, s3, 13
    s_add_u32 s53, s53, 65536""")
    k.srd(S2, 24, 0x40000, "s50")
    for r in range(16): k.e(f"v_cmp_le_i32 {sr(64+2*r,2)}, {(r&3)+8*(r>>2)}, v9")
    k.e("v_mov_b32 v3, 0xffff\nv_mov_b32 v4, 0xffff0000")
    for r in range(8):
        k.e(f"v_cndmask_b32 v9, 0, v3, {sr(64+4*r,2)}\nv_cndmask_b32 v{MK+r}, 0, v4, {sr(66+4*r,2)}\nv_or_b32 v{MK+r}, v9, v{MK+r}")
    k.stamp(6)
    sk = k.lab("nopoll")
    k.e(f"s_cmp_lt_i32 s51, 0\ns_cbranch_scc1 {sk}")
    k.poll(8, "s52")
    k.e(f"{sk}:"); k.wall(l=False)
    k.stamp(7)
    for n in range(2):
        k.e(f"s_add_u32 m0, s53, {n*4096}")
        for q in range(4): tkv = k.vm(f"buffer_load_dwordx4 v{5+n}, {S2}, 0 offen offset:{q*1024} sc1 lds")
    for s in range(5): t = w1.drain(s)
    k.w(l=t)
    for s in range(5, 10): w1.issue(s, "P", s - 5)
    k.w(v=tkv); k.e("s_barrier")
    k.stamp(8)
    order = [0, 8, 1, 2, 3, 4, 5, 6, 7]
    def rdk(n):
        t = order[n]; b = KB + 8 * (n & 1)
        return k.ds(f"ds_read_b128 {vr(b,4)}, v7 offset:{t*4096}\nds_read_b128 {vr(b+4,4)}, v7 offset:{t*4096+1024}")
    def mx(t, first):
        for i in range(8):
            a = S + 16 * t + 2 * i
            if first and i == 0: k.e(f"v_max_f32 v4, v{a}, v{a+1}")
            else: k.e(f"v_max3_f32 v4, v{a}, v{a+1}, v4")
    tk = rdk(0); inv = []
    for n in range(9):
        t = order[n]; b = KB + 8 * (n & 1)
        tn = rdk(n + 1) if n < 8 else None
        k.w(l=tk); tk = tn
        if t < 8:
            l1, l2 = k.lab("inv"), k.lab("back")
            k.e(f"s_cmp_gt_i32 s63, {t}\ns_cbranch_scc1 {l1}")
            inv.append((l1, l2, t))
        k.e(f"v_mfma_f32_32x32x16_bf16 {vr(S+16*t,16)}, {vr(b,4)}, {vr(Q,4)}, 0")
        k.e(f"v_mfma_f32_32x32x16_bf16 {vr(S+16*t,16)}, {vr(b+4,4)}, {vr(Q+4,4)}, {vr(S+16*t,16)}")
        if t < 8: k.e(f"{l2}:")
        if n == 3:
            for r in range(16): k.e(f"v_cndmask_b32 v{S+r}, v{S+r}, v{S+128+r}, {sr(64+2*r,2)}")
        if n == 4: mx(0, True); mx(1, False)
        if n > 4: mx(n - 3, False)
    vord = [1, 2, 3, 4, 5, 6, 7, 8, 0]; tv = {}
    def rdv(n):
        t = vord[n]; b = VB + 8 * (n & 1)
        tv[n] = k.ds(f"ds_read_b128 {vr(b,4)}, v7 offset:{t*4096+2048}\nds_read_b128 {vr(b+4,4)}, v7 offset:{t*4096+3072}")
    rdv(0)
    mx(6, False); mx(7, False)
    k.e("v_mov_b32 v5, v4\nv_permlane32_swap_b32 v4, v5\nv_max_f32 v4, v4, v5\nv_sub_f32 v4, 0, v4\nv_mov_b32 v5, v4")
    k.stamp(9)
    def soft(t, dst, mids):
        for i in range(8):
            a = S + 16 * t + 2 * i
            k.e(f"v_pk_add_f32 {vr(a,2)}, {vr(a,2)}, v[4:5]")
            if i > 0: k.e(f"v_cvt_pk_bf16_f32 v{dst+i-1}, v{a-2}, v{a-1}")
            k.e(f"v_exp_f32 v{a}, v{a}\nv_exp_f32 v{a+1}, v{a+1}")
            if i in mids: mids[i]()
        a = S + 16 * t + 14
        k.e(f"v_cvt_pk_bf16_f32 v{dst+7}, v{a}, v{a+1}")
    def pv(n, p, hlf):
        b = VB + 8 * (n & 1) + 4 * hlf
        c = vr(OA, 16) if (n or hlf) else "0"
        k.w(l=tv[n])
        k.e(f"v_mfma_f32_32x32x16_bf16 {vr(OA,16)}, {vr(b,4)}, {vr(p+4*hlf,4)}, {c}")
    pb = [PK, PF]; dr = {}
    for n in range(8):
        t = vord[n] if n < 7 else 0
        mids = {}
        if n > 0:
            mids[1] = lambda: pv(n - 1, pb[(n - 1) & 1], 0)
            mids[3] = lambda: pv(n - 1, pb[(n - 1) & 1], 1)
        if n < 5:
            def d(): dr[n] = w1.drain(5 + n)
            mids[5] = d
        if 1 <= n < 6:
            def iss(): k.w(l=dr[n - 1]); w1.issue(10 + n - 1, "P", n - 1)
            mids[4] = iss
        soft(t, pb[n & 1], mids)
        rdv(n + 1)
    for r in range(8): k.e(f"v_and_b32 v{PK+r}, v{MK+r}, v{PF+r}")
    for r in range(8): k.e(f"v_bfi_b32 v{PF+r}, v{MK+r}, 0, v{PF+r}")
    pv(7, PK, 0); pv(7, PK, 1); pv(8, PF, 0); pv(8, PF, 1)
    k.stamp(10)
    for s in range(10, 15): t = w1.drain(s)
    k.e(f"""s_lshl_b32 s50, s31, 4
    s_add_u32 s50, s50, s29
    s_lshl_b32 s51, s50, 11
    s_add_u32 s51, s51, {OF}
    s_lshl_b32 s50, s50, 2
    s_add_u32 s50, s50, {FB}
    v_cmp_gt_u32 vcc, 32, v1
    v_mov_b32 v5, v{OA+12}
    v_mov_b32 v6, v{OA+12}
    v_permlane32_swap_b32 v5, v6
    v_rcp_f32 v6, v6""")
    for r in range(16): k.e(f"v_mul_f32 v{OA+r}, v6, v{OA+r}")
    for r in range(8): k.e(f"v_cvt_pk_bf16_f32 v{PK+r}, v{OA+2*r}, v{OA+2*r+1}")
    k.e(f"v_cndmask_b32 v{PK+6}, 0, v{PK+6}, vcc\nv_cndmask_b32 v{PK+7}, 0, v{PK+7}, vcc")
    to = k.vm(f"buffer_store_dwordx4 {vr(PK,4)}, v2, {WS}, s51 offen sc1\nbuffer_store_dwordx4 {vr(PK+4,4)}, v2, {WS}, s51 offen offset:1024 sc1")
    k.w(l=t)
    for s in range(15, 20): w1.issue(s, "P", s - 15)
    def tailcode():
        for l1, l2, t in inv:
            k.e(f"{l1}:")
            for r in range(16): k.e(f"v_mov_b32 v{S+16*t+r}, 0xff800000")
            k.e(f"s_branch {l2}")
    return to, tailcode

def phaseC(k, w1, to, lab_nonC):
    AC, XRS, OB, WO = 16, 8, 48, 112
    CRED, CTR = 65536, 65536 + 16384
    k.e("s_lshl_b32 s52, s55, 15")
    wtr_addr(k, 10, True, "s52", "s55")
    for s in range(6): wdrain(k, lambda j, rd: vr(WO + 8 * s + 4 * j + 2 * rd, 2), 10, s, True)
    k.w(v=to); k.flag("s50")
    k.stamp(11)
    for s in range(6, 16): t = wdrain(k, lambda j, rd: vr(WO + 8 * s + 4 * j + 2 * rd, 2), 10, s, True)
    k.e(f"""s_lshr_b32 s56, s3, 1
    s_lshl_b32 s64, s61, 1
    s_add_u32 s64, s64, s56
    s_lshl_b32 s65, s60, 1
    s_add_u32 s65, s65, s55
    s_mul_i32 s50, s64, 28672
    s_lshl_b32 s51, s65, 6
    s_add_u32 s50, s50, s51
    v_and_b32 v6, 31, v1
    v_lshrrev_b32 v7, 5, v1
    v_mul_u32_u24 v5, 896, v6
    v_lshl_add_u32 v5, v7, 3, v5
    s_lshl_b32 s51, s64, 15
    s_lshl_b32 s52, s55, 14
    s_add_u32 s51, s51, s52
    s_add_u32 s51, s51, {OF}
    s_lshl_b32 s66, s64, 6
    s_lshl_b32 s52, s55, 5
    s_add_u32 s66, s66, s52
    s_add_u32 s66, s66, {FB}""")
    k.srd(S1, 4, 1835008); k.srd(S2, 24, 16384, "s51")
    k.w(l=t); k.e("s_barrier")
    k.commit()
    k.e(f"s_cmp_ge_u32 s28, 28\ns_cbranch_scc1 {lab_nonC}")
    for i in range(4): k.vm(f"buffer_load_dwordx2 {vr(XRS+2*i,2)}, v5, {S1}, s50 offen offset:{16*i}")
    for s in range(20, 28): w1.issue(s, "Q", s - 20)
    k.e("v_and_b32 v4, 7, v1\nv_lshlrev_b32 v4, 2, v4")
    k.stamp(12)
    k.poll(4, "s66")
    k.stamp(13)
    tk = []
    for s in range(16):
        if s % 4 == 0: k.e(f"s_movk_i32 s48, {s*1024}")
        tk.append(k.vm(f"buffer_load_dwordx4 {vr(OB+4*s,4)}, v2, {S2}, s48 offen offset:{(s%4)*1024} sc1"))
    for s in range(15, 20): t = w1.drain(s)
    k.e(f"""s_mul_i32 s50, s64, 7168
    s_add_u32 s50, s50, {ST}
    s_lshl_b32 s51, s65, 9
    s_add_u32 s51, s51, s50
    s_xor_b32 s52, s3, 1
    s_lshl_b32 s52, s52, 12
    s_add_u32 s52, s52, {CRED}
    s_lshl_b32 s53, s3, 12
    s_add_u32 s53, s53, {CRED}""")
    k.w(l=t)
    for s in range(28, 32): w1.issue(s, "P", s - 28)
    for s in range(16):
        k.w(v=tk[s])
        for j in range(2):
            c = vr(AC + 16 * j, 16) if s else "0"
            k.e(f"v_mfma_f32_32x32x16_bf16 {vr(AC+16*j,16)}, {vr(WO+8*s+4*j,4)}, {vr(OB+4*s,4)}, {c}")
        if 4 <= s < 12: w1.drain(20 + s - 4)
    k.stamp(14)
    k.e("v_add_u32 v3, s52, v2\nv_add_u32 v4, s53, v2")
    for q in range(4): t = k.ds(f"ds_write_b128 v3, {vr(AC+16+4*q,4)} offset:{q*1024}")
    for i in range(8):
        k.e(f"v_lshlrev_b32 v5, 16, v{XRS+i}\nv_and_b32 v6, 0xffff0000, v{XRS+i}\nv_add_f32 v{AC+2*i}, v{AC+2*i}, v5\nv_add_f32 v{AC+2*i+1}, v{AC+2*i+1}, v6")
    k.w(l=t); k.e("s_barrier")
    tr = [k.ds(f"ds_read_b128 {vr(AC+16+4*q,4)}, v4 offset:{q*1024}") for q in range(4)]
    k.e(f"""v_and_b32 v3, 31, v1
    v_lshrrev_b32 v4, 5, v1
    v_lshlrev_b32 v12, 4, v3
    v_lshl_add_u32 v13, v4, 9, v12
    s_lshl_b32 s52, s3, 11
    s_add_u32 s52, s52, {CTR}
    v_lshlrev_b32 v14, 6, v3
    v_lshl_add_u32 v14, v4, 3, v14
    v_add_u32 v14, s52, v14
    v_bfe_u32 v5, v1, 2, 2
    v_lshl_add_u32 v5, v4, 3, v5
    v_lshlrev_b32 v5, 6, v5
    v_bfe_u32 v6, v1, 4, 1
    v_lshl_add_u32 v5, v6, 5, v5
    v_and_b32 v6, 3, v1
    v_lshl_add_u32 v5, v6, 3, v5
    v_add_u32 v15, s52, v5""")
    for q in range(4):
        k.w(l=tr[q])
        for e in range(0, 4, 2): k.e(f"v_pk_add_f32 {vr(AC+4*q+e,2)}, {vr(AC+4*q+e,2)}, {vr(AC+16+4*q+e,2)}")
    k.e(f"v_pk_add_f32 v[4:5], {vr(AC,2)}, {vr(AC+2,2)}\nv_pk_mul_f32 v[6:7], {vr(AC,2)}, {vr(AC,2)}\nv_pk_fma_f32 v[6:7], {vr(AC+2,2)}, {vr(AC+2,2)}, v[6:7]")
    for r in range(4, 16, 2): k.e(f"v_pk_add_f32 v[4:5], v[4:5], {vr(AC+r,2)}\nv_pk_fma_f32 v[6:7], {vr(AC+r,2)}, {vr(AC+r,2)}, v[6:7]")
    k.e("""v_add_f32 v4, v4, v5
    v_add_f32 v5, v6, v7
    v_mov_b32 v6, v4
    v_mov_b32 v7, v5
    v_permlane32_swap_b32 v4, v6
    v_permlane32_swap_b32 v5, v7
    v_add_f32 v4, v4, v6
    v_add_f32 v5, v5, v7
    v_mov_b32 v6, s26
    v_mov_b32 v7, s26
    s_mov_b64 exec, 0xffffffff""")
    k.vm(f"buffer_store_dwordx4 v[4:7], v12, {WS}, s51 offen sc1")
    k.e("s_mov_b64 exec, -1")
    k.stamp(15)
    for r in range(8): k.e(f"v_cvt_pk_bf16_f32 v{48+r}, v{AC+2*r}, v{AC+2*r+1}")
    k.e(f"""s_mul_i32 s52, s64, 14
    s_add_u32 s52, s52, s65
    s_lshl_b32 s52, s52, 11
    s_add_u32 s52, s52, {HF}""")
    k.vm(f"buffer_store_dwordx4 v[48:51], v2, {WS}, s52 offen sc1\nbuffer_store_dwordx4 v[52:55], v2, {WS}, s52 offen offset:1024 sc1")
    for s in range(28, 32): w1.drain(s)
    lp, dn = k.lab("xpoll"), k.lab("xgot")
    k.e(f"s_add_u32 s53, s50, 4096\ns_mov_b32 s98, 0\n{lp}:")
    for n in range(7): k.e(f"buffer_load_dwordx4 {vr(64+4*n,4)}, v13, {WS}, {'s50' if n < 4 else 's53'} offen offset:{1024*(n&3)} sc1")
    k.e("s_add_u32 s98, s98, 1\ns_waitcnt vmcnt(6)\nv_xor_b32 v3, s26, v66")
    for n in range(1, 7): k.e(f"s_waitcnt vmcnt({6-n})\nv_xor_b32 v4, s26, v{66+4*n}\nv_or_b32 v3, v3, v4")
    k.e(f"""v_cmp_ne_u32 vcc, 0, v3
    s_cmp_gt_u32 s98, 30000
    s_cbranch_scc1 {dn}
    s_cbranch_vccnz {lp}
    {dn}:""")
    k.vd = k.vi
    k.stamp(16)
    for n in range(1, 7): k.e(f"v_pk_add_f32 v[64:65], v[64:65], {vr(64+4*n,2)}")
    k.e(f"""v_mov_b32 v6, v64
    v_mov_b32 v7, v65
    v_permlane32_swap_b32 v64, v6
    v_permlane32_swap_b32 v65, v7
    v_add_f32 v4, v64, v6
    v_add_f32 v5, v65, v7
    v_mul_f32 v4, {hx(1/448)}, v4
    v_mul_f32 v5, {hx(1/448)}, v5
    v_fma_f32 v5, -v4, v4, v5
    v_max_f32 v5, 0, v5
    v_add_f32 v6, {hx(1e-5)}, v5
    v_rsq_f32 v6, v6
    s_nop 0
    v_mul_f32 v5, v5, v6
    v_mul_f32 v5, v5, v6
    v_add_f32 v5, {hx(1e-5)}, v5
    v_rsq_f32 v5, v5
    s_nop 0
    v_mul_f32 v5, v5, v6
    v_mul_f32 v4, v4, v5""")
    for r in range(16): k.e(f"v_fma_f32 v{AC+r}, v{AC+r}, v5, -v4")
    for r in range(8): k.e(f"v_cvt_pk_bf16_f32 v{56+r}, v{AC+2*r}, v{AC+2*r+1}")
    for i in range(4): t = k.ds(f"ds_write_b64 v14, {vr(56+2*i,2)} offset:{16*i}")
    k.e(f"""s_lshl_b32 s52, s65, 7
    s_lshl_b32 s53, s64, 1
    s_add_u32 s52, s52, s53
    s_lshl_b32 s52, s52, 10
    s_add_u32 s52, s52, {HHF}
    s_lshl_b32 s50, s60, 7
    s_add_u32 s50, s50, s53
    s_add_u32 s50, s50, s55
    s_lshl_b32 s50, s50, 2
    s_add_u32 s50, s50, {FC}""")
    k.w(l=t)
    tt = []
    for t in range(2):
        for rd in range(2): x = k.ds(f"ds_read_b64_tr_b16 {vr(64+4*t+2*rd,2)}, v15 offset:{1024*t+256*rd}")
        tt.append(x)
    for t in range(2):
        k.w(l=tt[t]); th = k.vm(f"buffer_store_dwordx4 {vr(64+4*t,4)}, v2, {WS}, s52 offen offset:{1024*t} sc1")
    k.stamp(17)
    return th
```

```python
from g2b import *
ACC, RING, RED = 16, 80, 114688
DEP = 10
def red_addr(k):
    for x in range(1, 4):
        k.e(f"s_xor_b32 s50, s3, {x}\ns_mul_i32 s50, s50, 12288\ns_add_u32 s50, s50, {RED + (x-1)*4096}\nv_add_u32 v{3+x}, s50, v2")
    k.e(f"s_mul_i32 s50, s3, 12288\ns_add_u32 s50, s50, {RED}\nv_add_u32 v7, s50, v2")
def act_addr(k, astride):
    k.e(f"""s_lshr_b32 s56, s3, 1
    s_mul_i32 s50, s56, {astride}
    s_xor_b32 s51, s56, 1
    s_mul_i32 s51, s51, {astride}
    v_add_u32 v242, s50, v2
    v_add_u32 v243, s51, v2""")
def mix_loop(k, n, act_is_B, extra, after=None):
    tok = {}
    def issue(s):
        b = RING + 8 * (s % DEP)
        if s % 4 == 0: k.e(f"s_movk_i32 s49, {s*1024}")
        tok[s] = k.vm(f"buffer_load_dwordx4 {vr(b,4)}, v242, {S2}, s49 offen offset:{(s%4)*1024} sc1\nbuffer_load_dwordx4 {vr(b+4,4)}, v243, {S2}, s49 offen offset:{(s%4)*1024} sc1")
    for s in range(DEP): issue(s)
    if after: after()
    for s in range(n):
        k.w(v=tok[s]); a0 = RING + 8 * (s % DEP)
        extra(s, 0)
        for i in range(2):
            for j in range(2):
                acc = ACC + 16 * (2 * i + j); c = vr(acc, 16) if s else "0"
                A, B = ar(8 * s + 4 * j, 4), vr(a0 + 4 * i, 4)
                if not act_is_B: A, B = B, A
                k.e(f"v_mfma_f32_32x32x16_bf16 {vr(acc,16)}, {A}, {B}, {c}")
        if s + DEP < n: issue(s + DEP)
        extra(s, 1)
def reduce(k, mid=None):
    red_addr(k)
    for x in range(1, 4):
        for q in range(4): t = k.ds(f"ds_write_b128 v{3+x}, {vr(ACC+16*x+4*q,4)} offset:{q*1024}")
    if mid: mid()
    k.w(l=t); k.e("s_barrier")
    tr = [[k.ds(f"ds_read_b128 {vr(ACC+16+16*x+4*q,4)}, v7 offset:{x*4096+q*1024}") for q in range(4)] for x in range(3)]
    for x in range(3):
        for q in range(4):
            k.w(l=tr[x][q])
            for e in (0, 2): k.e(f"v_pk_add_f32 {vr(ACC+4*q+e,2)}, {vr(ACC+4*q+e,2)}, {vr(ACC+16+16*x+4*q+e,2)}")
class W2:
    def __init__(s, k): s.k = k; s.tok = {}
    def setup(s):
        k = s.k
        k.e(f"""s_mul_i32 s96, s3, 28672
        s_lshl_b32 s67, s23, 3
        s_add_u32 s67, s67, s10
        s_mul_i32 s50, s3, {448*4096}
        s_lshl_b32 s51, s67, 7
        s_add_u32 s50, s50, s51
        s_sub_u32 s51, 7340032, s50""")
        k.srd(SW, 16, "s51", "s50")
        wdma_addr(k, WD, 4096); wtr_addr(k, TA, True, "s96", "s55")
    def issue(s, st): s.tok[st] = wdma(s.k, SW, WD, "s96", st % 14, st * 16 * 4096)
    def drain(s, st):
        if st in s.tok: s.k.w(v=s.tok[st])
        return wdrain(s.k, lambda j, rd: ar(8 * st + 4 * j + 2 * rd, 2), TA, st % 14, True)

def gen():
    k = K(MAIN + "_kernel", 256, 256, 163840, 256, 256, 102)
    w1 = W1(k)
    nonC, nonD, joinE, fin = k.lab("nonC"), k.lab("nonD"), k.lab("joinE"), k.lab("fin")
    prologue(k); phaseA(k, w1)
    to, tailB = phaseB(k, w1)
    th = phaseC(k, w1, to, nonC)
    k.e(f"""s_lshl_b32 s51, s22, 18
    s_lshl_b32 s52, s3, 15
    s_add_u32 s51, s51, s52
    s_add_u32 s51, s51, {HHF}
    s_lshl_b32 s66, s22, 9
    s_lshl_b32 s52, s3, 7
    s_add_u32 s66, s66, s52
    s_add_u32 s66, s66, {FC}
    s_mov_b32 s57, s50""")
    k.srd(S2, 24, 0x40000, "s51")
    w2 = W2(k); w2.setup(); act_addr(k, 131072)
    k.e("v_and_b32 v6, 31, v1\nv_lshlrev_b32 v6, 2, v6")
    k.w(v=th); k.flag("s57")
    k.wall(v=False); k.e("s_barrier")
    k.stamp(18); k.commit()
    k.e(f"s_cmp_ge_u32 s10, 7\ns_cbranch_scc1 {nonD}")
    k.poll(6, "s66")
    k.stamp(19)
    nw = [0]
    def exD(s, pos):
        if pos == 1 and s + DEP >= 32 and nw[0] < 14: w2.issue(nw[0]); nw[0] += 1
    mix_loop(k, 32, True, exD)
    k.stamp(20)
    def mid():
        while nw[0] < 14: w2.issue(nw[0]); nw[0] += 1
    reduce(k, mid)
    k.stamp(21)
    k0 = -2 * math.log2(math.e) * math.sqrt(2 / math.pi); k1 = k0 * 0.044715
    k.e(f"""v_mov_b32 v8, {hx(k1)}
    s_mul_i32 s50, s23, 7
    s_add_u32 s50, s50, s10
    s_lshl_b32 s50, s50, 1
    s_add_u32 s50, s50, s55
    s_lshl_b32 s51, s22, 1
    s_add_u32 s51, s51, s56
    s_mul_i32 s52, s51, 56
    s_add_u32 s52, s52, s50
    s_lshl_b32 s52, s52, 11
    s_add_u32 s52, s52, {UF}
    s_mul_i32 s57, s22, 112
    s_lshl_b32 s50, s50, 1
    s_add_u32 s57, s57, s50
    s_add_u32 s57, s57, s56
    s_lshl_b32 s57, s57, 2
    s_add_u32 s57, s57, {FD}""")
    for i in range(8):
        k.e(f"v_lshlrev_b32 v4, 16, v{B1R+i}\nv_and_b32 v5, 0xffff0000, v{B1R+i}\nv_pk_add_f32 {vr(ACC+2*i,2)}, {vr(ACC+2*i,2)}, v[4:5]")
    T = 32
    nd = [0]
    def dr(c):
        for _ in range(c):
            if nd[0] < 14: nd[1:] = [w2.drain(nd[0])]; nd[0] += 1
    for g in range(4):
        R = range(4 * g, 4 * g + 4)
        for r in R: k.e(f"v_mul_f32 v{T+r}, v{ACC+r}, v{ACC+r}")
        for r in R: k.e(f"v_fmaak_f32 v{T+r}, v{T+r}, v8, {hx(k0)}")
        for r in R: k.e(f"v_mul_f32 v{T+r}, v{T+r}, v{ACC+r}")
        for r in R: k.e(f"v_exp_f32 v{T+r}, v{T+r}")
        dr(1)
        for r in R: k.e(f"v_add_f32 v{T+r}, 1.0, v{T+r}")
        for r in R: k.e(f"v_rcp_f32 v{T+r}, v{T+r}")
        dr(1)
        for r in R: k.e(f"v_mul_f32 v{T+r}, v{T+r}, v{ACC+r}")
        for r in (2 * g, 2 * g + 1): k.e(f"v_cvt_pk_bf16_f32 v{48+r}, v{T+2*r}, v{T+2*r+1}")
        if g & 1: tu = k.vm(f"buffer_store_dwordx4 {vr(48+2*g-2,4)}, v2, {WS}, s52 offen offset:{(g>>1)*1024} sc1")
    k.stamp(22)
    k.w(l=nd[1])
    for s in range(14, 19): w2.issue(s)
    dr(6)
    k.w(v=tu); k.flag("s57")
    k.w(l=nd[1])
    for s in range(19, 28): w2.issue(s)
    k.e('s_barrier')
    k.stamp(23); k.commit()
    k.e(f"""{joinE}:
    s_mul_i32 s51, s22, {2*114688}
    s_mul_i32 s52, s3, {28*1024}
    s_add_u32 s51, s51, s52
    s_add_u32 s51, s51, {UF}
    s_mul_i32 s66, s22, 448
    s_mul_i32 s52, s3, 112
    s_add_u32 s66, s66, s52
    s_add_u32 s66, s66, {FD}
    v_and_b32 v6, 31, v1
    v_min_u32 v6, 27, v6
    v_lshlrev_b32 v6, 2, v6""")
    k.srd(S2, 24, 2 * 114688, "s51"); k.srd(S1, 20, 1835008)
    act_addr(k, 114688)
    k.e(f"""s_lshl_b32 s64, s67, 1
    s_add_u32 s64, s64, s55
    s_lshl_b32 s65, s22, 1
    s_add_u32 s65, s65, s56
    s_mul_i32 s57, s64, 14
    s_add_u32 s57, s57, s65
    s_lshl_b32 s57, s57, 11
    s_add_u32 s57, s57, {HF}""")
    k.poll(6, "s66")
    k.stamp(24)
    w2.tok = {}
    hh = {}
    def aft(): hh[0] = k.vm(f"buffer_load_dwordx4 v[8:11], v2, {WS}, s57 offen sc1\nbuffer_load_dwordx4 v[12:15], v2, {WS}, s57 offen offset:1024 sc1")
    def exE(s, pos):
        if pos == 1 and s < 14: hh[14 + s] = w2.drain(14 + s)
        if pos == 0 and s >= 14: k.w(l=hh[s])
    mix_loop(k, 28, False, exE, aft)
    k.stamp(25)
    reduce(k)
    k.stamp(26)
    k.e(f"""v_and_b32 v3, 31, v1
    v_lshrrev_b32 v4, 5, v1
    v_mul_u32_u24 v7, 896, v3
    v_lshl_add_u32 v7, v4, 4, v7
    s_mul_i32 s50, s64, 28672
    s_lshl_b32 s51, s65, 6
    s_add_u32 s50, s50, s51
    v_lshlrev_b32 v{B2R}, 16, v{B2R}""")
    k.w(v=hh[0])
    for i in range(8):
        k.e(f"""v_lshlrev_b32 v4, 16, v{8+i}
        v_and_b32 v5, 0xffff0000, v{8+i}
        v_add_f32 v4, v4, v{B2R}
        v_add_f32 v5, v5, v{B2R}
        v_pk_add_f32 {vr(ACC+2*i,2)}, {vr(ACC+2*i,2)}, v[4:5]
        v_cvt_pk_bf16_f32 v{40+i}, v{ACC+2*i}, v{ACC+2*i+1}""")
        if i & 3 == 3:
            g = i >> 2
            k.e(f"v_permlane32_swap_b32 v{40+4*g}, v{42+4*g}\nv_permlane32_swap_b32 v{41+4*g}, v{43+4*g}")
            k.vm(f"buffer_store_dwordx4 {vr(40+4*g,4)}, v7, {S1}, s50 offen offset:{32*g}")
    k.e(f"s_or_b32 s50, s2, s3\ns_cmp_lg_u32 s50, 0\ns_cbranch_scc1 {fin}_c\ns_mov_b32 s50, {NONCE}")
    k.flag("s50")
    k.e(f"{fin}_c:")
    k.stamp(27); k.commit()
    k.e(f"{fin}:")
    if PROF:
        k.e(f"""s_memrealtime s[98:99]
        s_getreg_b32 s50, hwreg(HW_REG_XCC_ID)
        s_lshl_b32 s51, s2, 2
        s_add_u32 s51, s51, s3
        s_lshl_b32 s51, s51, 7
        s_add_u32 s51, s51, {TS}
        v_lshlrev_b32 v3, 2, v1
        s_waitcnt lgkmcnt(0)
        v_writelane_b32 v255, s98, 31
        v_writelane_b32 v255, s50, 29
        s_mov_b64 exec, 0xffffffff
        buffer_store_dword v255, v3, {WS}, s51 offen""")
    k.e(f"{k.name}_end:\ns_endpgm")
    tailB()
    k.e(f"""{nonC}:
    s_sub_u32 s50, s28, 28
    s_lshl_b32 s50, s50, 2
    s_add_u32 s50, s50, s3
    s_and_b32 s51, s27, 1
    s_mul_i32 s51, s51, 448
    s_add_u32 s50, s50, s51
    s_lshl_b32 s50, s50, 12
    s_lshl_b32 s51, s23, 10
    s_add_u32 s50, s50, s51""")
    k.srd(S1, 16, 7340032); k.wall()
    for j in range(56):
        k.e(f"s_add_u32 s51, s50, {((j&1)*896 + (j>>1)*16)*4096}")
        k.vm(f"buffer_load_dwordx4 v[16:19], v2, {S1}, s51 offen")
    w2.setup()
    k.e(f"{nonD}:\ns_cmp_ge_u32 s10, 8\ns_cbranch_scc1 {fin}")
    k.wall()
    for s in range(14): w2.issue(s)
    for s in range(14): t = w2.drain(s)
    k.w(l=t)
    for s in range(14, 28): w2.issue(s)
    k.e(f"s_lshr_b32 s56, s3, 1\ns_branch {joinE}")
    return k
if __name__ == "__main__":
    k = gen()
    t = build([k])
    name = [a[5:] for a in sys.argv if a.startswith("name=")]
    assemble(t, name[0] if name else ("v2p" if PROF else "v2"), [k])
    if "install" in sys.argv: open(f"cdna_kernels/{MAIN}.s", "w").write(t)
    print(len(t), "bytes", len(k.lines), "lines")
```

```python
import sys, os, struct, math
from asmlib import *
KVF, OF, HF, HHF, UF, ST, TS = 0x200000, 0x600000, 0x800000, 0xA00000, 0xC00000, 0xE00000, 0xF00000
FA, FB, FC, FD, NONCE = 0x100000, 0x120000, 0x140000, 0x160000, 0x18000C
FS = 7
PSC = os.environ.get('PSC', 'sc1')
WSZ = 0x1000000
PROF = "prof" in sys.argv
def f2u(x): return struct.unpack("<I", struct.pack("<f", x))[0]
def hx(x): return hex(f2u(x))
def vr(a, n): return f"v[{a}:{a+n-1}]"
def ar(a, n): return f"a[{a}:{a+n-1}]"
def sr(a, n): return f"s[{a}:{a+n-1}]"
WS, S1, S2, SW = "s[32:35]", "s[36:39]", "s[40:43]", "s[44:47]"

class K(Kern):
    def __init__(s, *a, **kw):
        super().__init__(*a, **kw); s.vi = s.vd = s.li = s.ld = 0; s.pend = None
    def vm(s, t):
        for l in t.split("\n"):
            if l.strip(): s.e(l); s.vi += l.strip().startswith("buffer_")
        assert s.vi - s.vd <= 63, "vmcnt overflow"
        return s.vi
    def ds(s, t):
        for l in t.split("\n"):
            if l.strip(): s.e(l); s.li += l.strip().startswith("ds_")
        return s.li
    def w(s, v=None, l=None):
        o = []
        if v is not None and v > s.vd: o.append(f"vmcnt({s.vi - v})"); s.vd = v
        if l is not None and l > s.ld:
            n = min(s.li - l, 15); o.append(f"lgkmcnt({n})"); s.ld = s.li - n
        if o: s.e("s_waitcnt " + " ".join(o))
    def wall(s, v=True, l=True):
        s.e("s_waitcnt " + ("vmcnt(0) " if v else "") + ("lgkmcnt(0)" if l else ""))
        if v: s.vd = s.vi
        if l: s.ld = s.li
    def srd(s, d, p, size, offs=None):
        d = int(d[2:d.index(":")])
        if offs is None: s.e(f"s_mov_b32 s{d}, s{p}\ns_mov_b32 s{d+1}, s{p+1}")
        else: s.e(f"s_add_u32 s{d}, s{p}, {offs}\ns_addc_u32 s{d+1}, s{p+1}, 0")
        s.e(f"s_mov_b32 s{d+2}, {size}\ns_mov_b32 s{d+3}, 0x20000")
    def stamp(s, n):
        if not PROF: return
        if s.pend is not None: s.e(f"v_writelane_b32 v255, s100, {s.pend}")
        s.e("s_memtime s[100:101]"); s.pend = n
    def commit(s):
        if PROF and s.pend is not None:
            s.e(f"s_waitcnt lgkmcnt(0)\nv_writelane_b32 v255, s100, {s.pend}"); s.pend = None; s.ld = s.li
    def poll(s, vaddr, soff, n):
        lp, l1, dn = s.lab("poll"), s.lab("one"), s.lab("got")
        s.e(f"""s_mov_b32 s98, 0
        s_mov_b32 s58, {hex((1 << n) - 1)}
        s_mov_b32 s59, 0
        {lp}:
        s_mov_b64 exec, s[58:59]
        buffer_load_dword v3, v{vaddr}, {WS}, {soff} offen {PSC}
        s_waitcnt vmcnt(0)
        v_cmp_ne_u32 s[58:59], s26, v3
        s_ff1_i32_b32 s99, s58
        s_cmp_lt_i32 s99, 0
        s_cbranch_scc1 {dn}
        s_lshl_b64 exec, 1, s99
        s_andn2_b64 s[58:59], s[58:59], exec
        {l1}:
        buffer_load_dword v3, v{vaddr}, {WS}, {soff} offen {PSC}
        s_add_u32 s98, s98, 1
        s_waitcnt vmcnt(0)
        v_cmp_ne_u32 vcc, s26, v3
        s_cmp_gt_u32 s98, 30000
        s_cbranch_scc1 {dn}
        s_cbranch_vccnz {l1}
        s_cmp_lg_u32 s58, 0
        s_cbranch_scc1 {lp}
        {dn}:
        s_mov_b64 exec, -1""")
        s.vd = s.vi
    def dual(s, t):
        if not FAST: return s.vm(t.replace("@", " sc1"))
        a, b = s.lab("pl"), s.lab("pj")
        s.e(f"s_cmp_eq_u32 s11, 1\ns_cbranch_scc1 {a}\n" + t.replace("@", " sc1") + f"\ns_branch {b}\n{a}:")
        r = s.vm(t.replace("@", "")); s.e(f"{b}:"); return r
    def flag(s, soff, local=False):
        s.e("v_mov_b32 v3, s26\nv_mov_b32 v4, 0\ns_mov_b64 exec, 1")
        if local: s.dual(f"buffer_store_dword v3, v4, {WS}, {soff} offen@")
        else: s.vm(f"buffer_store_dword v3, v4, {WS}, {soff} offen sc1")
        s.e("s_mov_b64 exec, -1")

def wdma_addr(k, d, stride):
    k.e(f"""v_lshrrev_b32 v3, 3, v1
    v_mul_u32_u24 v3, {stride}, v3
    v_and_b32 v4, 7, v1
    v_bfe_u32 v5, v1, 4, 1
    v_lshlrev_b32 v5, 2, v5
    v_xor_b32 v4, v4, v5
    v_lshl_add_u32 v{d}, v4, 4, v3
    v_add_u32 v{d+1}, {8*stride-1024}, v{d}""")
def wtr_addr(k, d, perm, sbase, sflip):
    k.e(f"""v_lshrrev_b32 v3, 5, v1
    v_bfe_u32 v4, v1, 2, 2
    v_lshl_add_u32 v4, v3, {2 if perm else 3}, v4
    v_lshlrev_b32 v4, 7, v4
    v_bfe_u32 v5, v1, 4, 1
    v_lshl_add_u32 v4, v5, 5, v4
    v_and_b32 v5, 3, v1
    v_lshl_add_u32 v4, v5, 3, v4
    v_add_u32 v4, {sbase}, v4
    v_bfe_u32 v5, v1, 3, 1
    v_xor_b32 v5, {sflip}, v5
    v_lshl_add_u32 v{d}, v5, 6, v4
    v_xor_b32 v5, 1, v5
    v_lshl_add_u32 v{d+1}, v5, 6, v4""")
NOBG = "nobg" in sys.argv
FAST = "nofast" not in sys.argv
XT = 0x180080
TNT = " nt" if "tnt" in sys.argv else ""
XNT = " nt" if "xnt" in sys.argv else ""
ONT = " nt" if "ont" in sys.argv else ""
def opt(n, d):
    for a in sys.argv:
        if a.startswith(n + "="): return int(a.split("=")[1])
    return d
UP, TG = opt("up", 3), opt("tg", 0)
def wdma(k, srd_, va, sbase, slot, goff):
    if NOBG: return k.vi
    k.e(f"s_add_u32 m0, {sbase}, {slot*2048}\ns_mov_b32 s48, {goff}")
    return k.vm(f"buffer_load_dwordx4 v{va}, {srd_}, s48 offen lds\nbuffer_load_dwordx4 v{va+1}, {srd_}, s48 offen offset:1024 lds")
def wdrain(k, dst, va, slot, perm):
    for j in range(2):
        for rd in range(2):
            t = k.ds(f"ds_read_b64_tr_b16 {dst(j, rd)}, v{va+j} offset:{slot*2048 + rd*(1024 if perm else 512)}")
    return t
PB, TA, TB_, WD, B1R, B2R = 114688, 240, 242, 244, 246, 254
class W1:
    def __init__(s, k): s.k = k; s.tok = {}; s.slot = {}
    def issue(s, st, reg, n):
        s.slot[st] = (reg, n)
        s.tok[st] = wdma(s.k, SW, WD, "s96" if reg == "P" else "s97", n, st * 16 * 3584)
    def drain(s, st):
        reg, n = s.slot[st]; s.k.w(v=s.tok[st])
        return wdrain(s.k, lambda j, rd: ar(8 * st + 4 * j + 2 * rd, 2), TA if reg == "P" else TB_, n, False)

def prologue(k):
    k.e(f"s_cmp_ge_u32 s2, 256\ns_cbranch_scc1 {k.name}_end")
    if PROF: k.e("s_memrealtime s[98:99]\nv_mov_b32 v255, 0")
    k.stamp(0)
    k.e("""s_load_dwordx16 s[4:19], s[0:1], 0
    s_load_dwordx4 s[20:23], s[0:1], 64
    s_load_dwordx2 s[24:25], s[0:1], 80
    v_lshrrev_b32 v2, 6, v0
    v_and_b32 v1, 63, v0
    v_readfirstlane_b32 s3, v2
    v_lshlrev_b32 v2, 4, v1
    s_and_b32 s27, s2, 7
    s_lshr_b32 s28, s2, 3
    s_lshr_b32 s29, s28, 1
    s_and_b32 s30, s28, 1
    s_lshl_b32 s48, s27, 1
    s_add_u32 s30, s30, s48
    s_lshl_b32 s31, s30, 2
    s_add_u32 s31, s31, s3""")

def phaseA(k, w1):
    WB, CS, SCR = 65536, 160256, 161792
    XA, WA, XR, WR, FB_, AQ, AK, AV, SS, CA, ON = 10, 14, 16, 20, 32, 64, 80, 96, 112, 120, 132
    k.e("""v_lshrrev_b32 v3, 3, v1
    v_mul_u32_u24 v3, 896, v3
    v_and_b32 v4, 7, v1
    v_lshrrev_b32 v5, 4, v1
    v_xor_b32 v4, v4, v5
    v_lshl_add_u32 v10, v4, 4, v3
    v_xor_b32 v4, 4, v4
    v_lshl_add_u32 v11, v4, 4, v3
    v_add_u32 v12, 12288, v10
    v_add_u32 v13, 18432, v11
    v_add_u32 v11, 6144, v11
    v_lshrrev_b32 v3, 2, v1
    v_mul_u32_u24 v3, 2688, v3
    v_and_b32 v4, 3, v1
    v_lshl_add_u32 v14, v4, 4, v3
    s_mul_i32 s50, s31, 28672
    s_mul_i32 s51, s29, 56
    s_sub_u32 s52, 1204224, s51
    s_lshl_b32 s97, s3, 14
    s_mul_i32 s53, s3, 3264
    s_mul_i32 s54, s3, 43008
    s_waitcnt lgkmcnt(0)""")
    if PROF: k.e("v_writelane_b32 v255, s98, 30")
    k.srd(S1, 4, 28672, "s50"); k.srd(S2, 6, "s52", "s51")
    tok = {}
    def dma(c):
        k.e(f"s_add_u32 m0, s97, {(c&3)*4096}\ns_movk_i32 s48, {c*128}")
        for q in range(4):
            k.vm(f"buffer_load_dwordx4 v{XA+q}, {S1}, s48 offen offset:{q*1024}{XNT} lds"); yield
        for t in range(3):
            k.e(f"s_add_u32 m0, s53, {WB + c*13056 + t*1088}\ns_add_u32 s49, s54, {c*172032 + t*896}")
            tok[c] = k.vm(f"buffer_load_dwordx4 v{WA}, {S2}, s49 offen lds"); yield
    for c in range(UP): list(dma(c))
    k.stamp(1)
    k.e(f"s_add_u32 s10, s24, {NONCE}\ns_addc_u32 s11, s25, 0\ns_load_dword s26, s[10:11], 0")
    k.srd(WS, 24, WSZ)
    k.e(f"""v_cmp_gt_u32 vcc, 84, v0
    s_and_saveexec_b64 s[56:57], vcc
    v_mul_u32_u24 v8, 171, v0
    v_lshrrev_b32 v8, 9, v8
    v_mul_u32_u24 v8, 3, v8
    v_cmp_eq_u32 vcc, v8, v0
    v_mov_b32 v9, 0x3f80
    v_cndmask_b32 v8, 0, v9, vcc
    v_mov_b32 v9, 0
    v_mul_u32_u24 v7, 1088, v0
    v_add_u32 v7, {WB + 1080}, v7
    ds_write_b64 v7, v[8:9]
    s_mov_b64 exec, s[56:57]
    v_and_b32 v7, 31, v1
    v_lshrrev_b32 v3, 5, v1
    v_lshrrev_b32 v4, 1, v7
    v_and_b32 v4, 7, v4
    v_xor_b32 v4, v4, v3
    s_lshl_b32 s48, s3, 1
    v_xor_b32 v4, s48, v4
    v_lshlrev_b32 v5, 7, v7
    v_add_u32 v5, s97, v5""")
    for j in range(4): k.e(f"v_xor_b32 v6, {2*j}, v4\nv_lshl_add_u32 v{XR+j}, v6, 4, v5")
    k.e(f"""v_bfe_u32 v4, v1, 2, 2
    v_lshl_add_u32 v4, v3, 3, v4
    v_lshlrev_b32 v4, 6, v4
    v_bfe_u32 v5, v1, 4, 1
    v_lshl_add_u32 v4, v5, 5, v4
    v_and_b32 v6, 3, v1
    v_lshl_add_u32 v4, v6, 3, v4
    v_add_u32 v7, 256, v4
    v_and_b32 v6, 19, v1
    v_cmp_eq_u32 vcc, 19, v6
    v_mov_b32 v6, 1080
    v_cndmask_b32 v4, v4, v6, vcc
    v_cndmask_b32 v7, v7, v6, vcc""")
    for j in range(4):
        k.e(f"s_xor_b32 s48, s3, {j}\ns_mul_i32 s48, s48, 3264\ns_add_u32 s48, s48, {WB}")
        k.e(f"v_add_u32 v{WR+2*j}, s48, v4\nv_add_u32 v{WR+2*j+1}, s48, v7")
    k.e(f"v_mov_b32 v{ON}, 0x3f803f80\nv_mov_b32 v{ON+1}, 0x3f803f80")
    k.e(f"""s_and_b32 s50, s27, 1
    s_lshr_b32 s23, s27, 1
    s_mul_i32 s51, s28, 86
    s_lshr_b32 s51, s51, 8
    s_lshr_b32 s52, s28, 2
    s_cmp_eq_u32 s50, 0
    s_cselect_b32 s60, s52, s51
    s_sub_u32 s51, 4, s50
    s_mul_i32 s51, s51, s60
    s_sub_u32 s22, s28, s51
    s_lshl_b32 s51, s50, 2
    s_add_u32 s22, s22, s51
    s_mul_i32 s96, s3, 10240
    s_add_u32 s96, s96, {PB}
    s_and_b32 s55, s3, 1
    s_waitcnt lgkmcnt(0)
    s_mov_b32 s10, s60
    s_mul_i32 s62, s28, 147
    s_lshr_b32 s62, s62, 10
    s_mul_i32 s60, s62, 7
    s_sub_u32 s60, s28, s60
    s_lshl_b32 s61, s27, 2
    s_add_u32 s61, s61, s62
    s_lshr_b32 s51, s26, 16
    s_add_u32 s51, s51, 0x1357
    s_and_b32 s51, s51, 0x3fff
    s_add_u32 s26, s26, 0x79b9
    s_and_b32 s26, s26, 0xffff
    s_lshl_b32 s51, s51, 16
    s_or_b32 s26, s26, s51""")
    if FAST:
        sk = k.lab("noxt")
        k.e(f"""s_getreg_b32 s11, hwreg(HW_REG_XCC_ID, 0, 4)
        s_lshl_b32 s11, s11, 28
        s_xor_b32 s11, s11, s26
        s_lshl_b32 s63, s27, 7
        s_add_u32 s63, s63, {XT}
        s_lshl_b32 s51, s28, 2
        s_add_u32 s51, s51, s63
        v_mov_b32 v3, s11
        s_cmp_eq_u32 s3, 0
        s_cselect_b32 s52, 0, 0x7fffffff
        v_mov_b32 v4, s52
        s_mov_b64 exec, 1""")
        k.vm(f"buffer_store_dword v3, v4, {WS}, s51 offen sc1")
        k.e("s_mov_b64 exec, -1")
    wdma_addr(k, WD, 3584); wtr_addr(k, TA, False, "s96", "s55"); wtr_addr(k, TB_, False, "s97", "s55")
    def lines():
        k.e(f"""s_lshl_b32 s64, s29, 6
        s_add_u32 s64, s64, s31
        s_lshl_b32 s64, s64, {FS}
        s_add_u32 s64, s64, {FA}
        s_lshl_b32 s65, s31, 4
        s_add_u32 s65, s65, s29
        s_lshl_b32 s72, s65, 11
        s_add_u32 s72, s72, {OF - 8*128}
        s_lshl_b32 s65, s65, {FS}
        s_add_u32 s65, s65, {FB}
        s_lshr_b32 s56, s3, 1
        s_lshl_b32 s68, s61, 1
        s_add_u32 s68, s68, s56
        s_lshl_b32 s66, s60, 6
        s_add_u32 s66, s66, s68
        s_lshl_b32 s66, s66, 1
        s_add_u32 s66, s66, s55
        s_lshl_b32 s66, s66, {FS}
        s_add_u32 s66, s66, {FC}
        s_mul_i32 s68, s68, 14
        s_lshl_b32 s69, s60, 1
        s_add_u32 s68, s68, s69
        s_add_u32 s68, s68, s55
        s_lshl_b32 s68, s68, 9
        s_add_u32 s68, s68, {ST - 4*128}
        s_mul_i32 s67, s22, 56
        s_lshl_b32 s69, s50, 1
        s_add_u32 s67, s67, s69
        s_add_u32 s67, s67, s55
        s_lshl_b32 s67, s67, 1
        s_add_u32 s67, s67, s56
        s_lshl_b32 s67, s67, {FS}
        s_add_u32 s67, s67, {FD}
        v_lshlrev_b32 v4, 7, v1
        v_add_u32 v5, s72, v4
        v_add_u32 v4, s68, v4
        v_cmp_gt_u32 vcc, 8, v1
        v_cndmask_b32 v4, v5, v4, vcc""")
        for i in range(4): k.e(f"v_writelane_b32 v4, s{64+i}, {i}")
        k.e(f"s_mov_b64 exec, {0xffffff if FAST else 0xff}")
        k.vm(f"buffer_load_dword v136, v4, {WS}, 0 offen{ONT}")
        k.e("s_mov_b64 exec, -1"); yield
        if FAST:
            k.e("v_and_b32 v141, 31, v1\nv_lshlrev_b32 v141, 2, v141")
            k.vm(f"buffer_load_dword v140, v141, {WS}, s63 offen sc1"); yield
    def touches():
        k.e("""s_mul_i32 s50, s23, 7
        s_add_u32 s50, s50, s10
        s_lshl_b32 s51, s50, 1
        s_add_u32 s51, s51, s55
        s_lshl_b32 s51, s51, 6
        v_lshrrev_b32 v3, 5, v1
        v_lshlrev_b32 v3, 3, v3""")
        yield from lines()
        k.srd(SW, 14, 3584)
        for i in range(4): k.vm(f"buffer_load_dwordx2 {vr(B1R+2*i,2)}, v3, {SW}, s51 offen offset:{16*i}")
        yield
        k.e("""s_lshl_b32 s51, s23, 3
        s_add_u32 s51, s51, s10
        s_lshl_b32 s51, s51, 1
        s_add_u32 s51, s51, s55
        s_lshl_b32 s51, s51, 6
        v_and_b32 v3, 31, v1
        v_lshlrev_b32 v3, 1, v3""")
        k.srd(SW, 18, 4096)
        k.vm(f"buffer_load_ushort v{B2R}, v3, {SW}, s51 offen"); yield
        k.srd(SW, 8, 401408)
        k.e("s_lshl_b32 s51, s2, 2\ns_add_u32 s51, s51, s3\ns_lshl_b32 s51, s51, 10")
        k.vm(f"buffer_load_dwordx4 v[136:139], v2, {SW}, s51 offen"); yield
        k.e("""s_and_b32 s51, s27, 1
        s_lshl_b32 s51, s51, 5
        s_add_u32 s51, s51, s28
        s_lshl_b32 s51, s51, 2
        s_add_u32 s51, s51, s3
        s_lshr_b32 s52, s51, 6
        s_lshl_b32 s52, s52, 4
        s_bfe_u32 s56, s51, 0x20004
        s_lshl_b32 s56, s56, 9
        s_add_u32 s52, s52, s56
        s_and_b32 s51, s51, 15
        s_add_u32 s52, s52, s51
        s_mul_i32 s52, s52, 3584
        s_mul_i32 s51, s23, 896
        s_add_u32 s52, s52, s51
        v_cmp_gt_u32 vcc, 56, v1
        v_mov_b32 v3, 0x7fffffff
        v_cndmask_b32 v3, v3, v2, vcc""")
        k.srd(SW, 12, 7340032)
        if "full" in sys.argv: k.e(f"s_and_b32 s51, s27, 1\ns_mul_i32 s51, s51, {64*3584}\ns_sub_u32 s51, {32*3584}, s51\nv_add_u32 v5, s51, v3")
        for j in range(0 if NOBG else 8):
            k.vm(f"buffer_load_dwordx4 v[136:139], v3, {SW}, s52 offen{TNT}")
            if "full" in sys.argv: k.vm(f"buffer_load_dwordx4 v[136:139], v5, {SW}, s52 offen{TNT}")
            if j < 7: k.e(f"s_add_u32 s52, s52, {64*3584}")
            yield
        k.e(f"""s_mul_i32 s51, s3, {512*3584}
        s_lshl_b32 s50, s50, 7
        s_add_u32 s51, s51, s50
        s_sub_u32 s52, 7340032, s51
        s_cmp_lt_u32 s10, 7
        s_cselect_b32 s52, s52, 0
        s_cselect_b32 s51, s51, 0""")
        k.srd(SW, 12, "s52", "s51")
    def reads(g):
        c, j = g >> 2, g & 3; b = FB_ + 16 * (g & 1)
        k.e(f"ds_read_b128 {vr(b,4)}, v{XR+j} offset:{(c&3)*4096}")
        for t in range(3):
            for rd in range(2):
                k.e(f"ds_read_b64_tr_b16 {vr(b+4+4*t+2*rd,2)}, v{WR+2*j+rd} offset:{(c&3)*13056 + t*1088}")
    k.w(v=tok[0]); k.e("s_waitcnt lgkmcnt(0)\ns_barrier")
    k.stamp(2)
    reads(0)
    tq = touches(); dq = None
    def slot(g, n):
        nonlocal dq
        c, j = g >> 2, g & 3
        if c + UP < 7 and (j, n) != (3, 1):
            if (j, n) == (0, 0): dq = dma(c + UP)
            next(dq)
        elif g >= TG or (g, n) == (27, 1):
            if (g, n) == (27, 1): list(tq)
            else: next(tq, None)
    if TG < 0: list(tq)
    for g in range(28):
        c, j = g >> 2, g & 3; b = FB_ + 16 * (g & 1)
        if g + 1 < 28:
            if j == 3:
                k.w(v=tok[c + 1]); k.e("s_barrier")
                if c == 3:
                    for i in range(8): k.e(f"v_add_u32 v{WR+i}, {4*13056}, v{WR+i}")
            reads(g + 1)
            k.e("s_waitcnt lgkmcnt(7)")
        else: k.e("s_waitcnt lgkmcnt(0)")
        z = lambda a, n: vr(a, n) if g else "0"
        k.e(f"v_mfma_f32_32x32x16_bf16 {vr(AQ,16)}, {vr(b+4,4)}, {vr(b,4)}, {z(AQ,16)}")
        slot(g, 0)
        k.e(f"v_mfma_f32_4x4x4_16b_bf16 {vr(SS,4)}, {vr(b,2)}, {vr(b,2)}, {z(SS,4)}")
        k.e(f"v_mfma_f32_32x32x16_bf16 {vr(AK,16)}, {vr(b+8,4)}, {vr(b,4)}, {z(AK,16)}")
        slot(g, 1)
        k.e(f"v_mfma_f32_4x4x4_16b_bf16 {vr(SS+4,4)}, {vr(b+2,2)}, {vr(b+2,2)}, {z(SS+4,4)}")
        k.e(f"v_mfma_f32_32x32x16_bf16 {vr(AV,16)}, {vr(b,4)}, {vr(b+12,4)}, {z(AV,16)}")
        if j == 0:
            for hlf in range(2):
                for t in range(3):
                    cc = vr(CA+4*t, 4) if (g or hlf) else "0"
                    k.e(f"v_mfma_f32_4x4x4_16b_bf16 {vr(CA+4*t,4)}, {vr(ON,2)}, {vr(b+4+4*t+2*hlf,2)}, {cc}")
    k.stamp(3)
    k.e(f"""v_and_b32 v7, 31, v1
    v_lshlrev_b32 v3, 4, v7
    s_lshl_b32 s48, s3, 2
    v_add_u32 v4, s48, v3
    v_add_u32 v4, {CS}, v4
    v_add_u32 v3, {CS}, v3
    s_lshl_b32 s48, s3, 9
    s_add_u32 s48, s48, {SCR}
    v_lshl_add_u32 v5, v7, 2, s48
    v_lshrrev_b32 v6, 5, v1
    v_lshl_add_u32 v6, v6, 4, s48""")
    for t in range(3): k.e(f"v_mov_b32 v{CA+4*t+1}, v{CA+4*t}")
    for t in range(3): k.e(f"v_permlane32_swap_b32 v{CA+4*t}, v{CA+4*t+1}")
    for t in range(3): k.e(f"v_add_f32 v{CA+4*t}, v{CA+4*t}, v{CA+4*t+1}\nds_write_b32 v4, v{CA+4*t} offset:{512*t}")
    for i in range(4): k.e(f"v_add_f32 v{SS+i}, v{SS+i}, v{SS+4+i}")
    k.e(f"""v_and_b32 v7, 3, v1
    v_cmp_eq_u32 vcc, 1, v7
    v_cmp_eq_u32 s[56:57], 2, v7
    v_cmp_eq_u32 s[58:59], 3, v7
    v_cndmask_b32 v{SS}, v{SS}, v{SS+1}, vcc
    v_cndmask_b32 v{SS}, v{SS}, v{SS+2}, s[56:57]
    v_cndmask_b32 v{SS}, v{SS}, v{SS+3}, s[58:59]
    v_mov_b32 v8, v{AQ+12}
    v_mov_b32 v9, v{AQ+12}
    v_mov_b32 v{SS+1}, v{SS}
    s_waitcnt lgkmcnt(0)
    s_barrier
    ds_read_b128 v[32:35], v3
    ds_read_b128 v[36:39], v3 offset:512
    ds_read_b128 v[40:43], v3 offset:1024
    v_permlane32_swap_b32 v8, v9
    v_permlane32_swap_b32 v{SS}, v{SS+1}
    v_mul_f32 v9, {hx(1/448)}, v9
    v_add_f32 v8, v{SS}, v{SS+1}
    v_mul_f32 v8, {hx(1/448)}, v8
    v_fma_f32 v8, -v9, v9, v8
    v_max_f32 v8, 0, v8
    v_add_f32 v8, {hx(1e-5)}, v8
    v_rsq_f32 v8, v8
    s_nop 0
    v_mul_f32 v7, v8, v9
    ds_write_b32 v5, v8 offset:256
    ds_write_b32 v5, v7 offset:384
    s_waitcnt lgkmcnt(2)""")
    for t in range(3):
        b = 32 + 4 * t
        k.e(f"v_add_f32 v{b}, v{b}, v{b+1}\nv_add_f32 v{b+2}, v{b+2}, v{b+3}\nv_add_f32 v{b}, v{b}, v{b+2}")
    k.e("ds_write_b32 v5, v32\nds_write_b32 v5, v36 offset:128\ns_waitcnt lgkmcnt(0)")
    TB = 144
    for a, o in ((0, 128), (1, 256), (2, 384), (3, 0)):
        for i in range(4): k.e(f"ds_read_b128 {vr(TB+16*a+4*i,4)}, v6 offset:{o+32*i}")
    cq = 28 ** -0.5 * math.log2(math.e)
    k.e(f"""v_mul_f32 v7, {hx(cq)}, v8
    s_lshl_b32 s50, s29, 6
    s_add_u32 s50, s50, s31
    s_lshl_b32 s51, s50, 12
    s_add_u32 s51, s51, {KVF}
    s_lshl_b32 s50, s50, {FS}
    s_add_u32 s50, s50, {FA}
    s_lshl_b32 s48, s3, 12
    s_add_u32 s48, s48, {65536+32768}
    v_add_u32 v4, s48, v2
    v_and_b32 v3, 31, v1
    v_cmp_eq_u32 vcc, 28, v3
    v_mov_b32 v3, 0x3f803f80
    s_waitcnt lgkmcnt(12)""")
    for r in range(16): k.e(f"v_fma_f32 v{AK+r}, -v9, v{TB+r}, v{AK+r}")
    for r in range(16): k.e(f"v_mul_f32 v{AK+r}, v8, v{AK+r}")
    for r in range(8): k.e(f"v_cvt_pk_bf16_f32 v{52+r}, v{AK+2*r}, v{AK+2*r+1}")
    k.vm(f"buffer_store_dwordx4 v[52:55], v2, {WS}, s51 offen sc1\nbuffer_store_dwordx4 v[56:59], v2, {WS}, s51 offen offset:1024 sc1")
    k.e("s_waitcnt lgkmcnt(4)")
    for r in range(16): k.e(f"v_mul_f32 v{AV+r}, v{TB+16+r}, v{AV+r}")
    for r in range(16): k.e(f"v_fma_f32 v{AV+r}, -v{TB+32+r}, v40, v{AV+r}")
    for r in range(8): k.e(f"v_cvt_pk_bf16_f32 v{44+r}, v{AV+2*r}, v{AV+2*r+1}")
    for r in range(8): k.e(f"v_cndmask_b32 v{44+r}, v{44+r}, v3, vcc")
    tkv = k.vm(f"buffer_store_dwordx4 v[44:47], v2, {WS}, s51 offen offset:2048 sc1\nbuffer_store_dwordx4 v[48:51], v2, {WS}, s51 offen offset:3072 sc1")
    k.stamp(4)
    for s in range(5): w1.issue(s, "P", s)
    k.e("ds_write_b128 v4, v[52:55]\nds_write_b128 v4, v[56:59] offset:1024\nds_write_b128 v4, v[44:47] offset:2048\nds_write_b128 v4, v[48:51] offset:3072\ns_waitcnt lgkmcnt(4)")
    for r in range(16): k.e(f"v_fma_f32 v{AQ+r}, -v9, v{TB+48+r}, v{AQ+r}")
    for r in range(16): k.e(f"v_mul_f32 v{AQ+r}, v7, v{AQ+r}")
    for r in range(8): k.e(f"v_cvt_pk_bf16_f32 v{208+r}, v{AQ+2*r}, v{AQ+2*r+1}")
    k.w(v=tkv); k.flag("s50")
    if FAST:
        lp, dn = k.lab("xt"), k.lab("xtd")
        k.e(f"""s_mov_b32 s98, 0
        {lp}:
        v_xor_b32 v140, s11, v140
        v_and_b32 v3, 0xfffffff, v140
        v_cmp_ne_u32 vcc, 0, v3
        s_cmp_gt_u32 s98, 30000
        s_cbranch_scc1 {dn}
        s_cbranch_vccz {dn}
        buffer_load_dword v140, v141, {WS}, s63 offen sc1
        s_add_u32 s98, s98, 1
        s_waitcnt vmcnt(0)
        s_branch {lp}
        {dn}:
        v_cmp_ne_u32 vcc, 0, v140
        s_cmp_eq_u64 vcc, 0
        s_cselect_b32 s11, 1, 0""")
    k.stamp(5)
```

```python
from g2a import *
def phaseB(k, w1):
    Q, KB, VB, PK, PF, MK, OA, S = 208, 16, 32, 48, 56, 216, 224, 64
    k.e(f"""s_mul_i32 s50, s3, {112*896}
    s_lshl_b32 s51, s60, 7
    s_add_u32 s50, s50, s51
    s_sub_u32 s51, 401408, s50""")
    k.srd(S1, 8, "s51", "s50")
    wdma_addr(k, 10, 896)
    for n in range(8): wdma(k, S1, 10, "s97", n, (28 * (n >> 1) + 16 * (n & 1)) * 896)
    k.e(f"""s_lshl_b32 s50, s29, 18
    s_add_u32 s50, s50, {KVF}
    s_lshl_b32 s51, s30, 2
    s_lshl_b32 s52, s3, 1
    s_add_u32 s51, s51, s52
    s_sub_u32 s51, s51, 8
    s_lshl_b32 s52, s51, 12
    v_add_u32 v5, s52, v2
    v_add_u32 v6, 4096, v5
    s_lshl_b32 s52, s29, 6
    s_add_u32 s52, s52, s51
    s_lshl_b32 s52, s52, {FS}
    s_add_u32 s52, s52, {FA}
    v_and_b32 v8, 1, v1
    v_lshlrev_b32 v8, {FS}, v8
    v_and_b32 v9, 31, v1
    v_lshrrev_b32 v7, 5, v1
    v_lshlrev_b32 v7, 2, v7
    v_sub_u32 v9, v9, v7
    s_sub_u32 s63, 8, s31
    s_max_i32 s63, s63, 0
    s_lshl_b32 s53, s3, 12
    s_add_u32 s53, s53, 65536
    v_add_u32 v7, s53, v2
    s_lshl_b32 s53, s3, 13
    s_add_u32 s53, s53, 65536""")
    k.srd(S2, 24, 0x40000, "s50")
    for r in range(16): k.e(f"v_cmp_le_i32 {sr(64+2*r,2)}, {(r&3)+8*(r>>2)}, v9")
    k.e("v_mov_b32 v3, 0xffff\nv_mov_b32 v4, 0xffff0000")
    for r in range(8):
        k.e(f"v_cndmask_b32 v9, 0, v3, {sr(64+4*r,2)}\nv_cndmask_b32 v{MK+r}, 0, v4, {sr(66+4*r,2)}\nv_or_b32 v{MK+r}, v9, v{MK+r}")
    k.stamp(6)
    sk = k.lab("nopoll")
    k.e(f"s_cmp_lt_i32 s51, 0\ns_cbranch_scc1 {sk}")
    k.poll(8, "s52", 2)
    k.e(f"{sk}:"); k.wall(l=False)
    k.stamp(7)
    for n in range(2):
        k.e(f"s_add_u32 m0, s53, {n*4096}")
        for q in range(4): tkv = k.vm(f"buffer_load_dwordx4 v{5+n}, {S2}, 0 offen offset:{q*1024} sc1 lds")
    for s in range(5): t = w1.drain(s)
    k.w(l=t)
    for s in range(5, 10): w1.issue(s, "P", s - 5)
    k.w(v=tkv); k.e("s_barrier")
    k.stamp(8)
    order = [0, 8, 1, 2, 3, 4, 5, 6, 7]
    def rdk(n):
        t = order[n]; b = KB + 8 * (n & 1)
        return k.ds(f"ds_read_b128 {vr(b,4)}, v7 offset:{t*4096}\nds_read_b128 {vr(b+4,4)}, v7 offset:{t*4096+1024}")
    def mx(t, first):
        for i in range(8):
            a = S + 16 * t + 2 * i
            if first and i == 0: k.e(f"v_max_f32 v4, v{a}, v{a+1}")
            else: k.e(f"v_max3_f32 v4, v{a}, v{a+1}, v4")
    tk = rdk(0); inv = []
    for n in range(9):
        t = order[n]; b = KB + 8 * (n & 1)
        tn = rdk(n + 1) if n < 8 else None
        k.w(l=tk); tk = tn
        if t < 8:
            l1, l2 = k.lab("inv"), k.lab("back")
            k.e(f"s_cmp_gt_i32 s63, {t}\ns_cbranch_scc1 {l1}")
            inv.append((l1, l2, t))
        k.e(f"v_mfma_f32_32x32x16_bf16 {vr(S+16*t,16)}, {vr(b,4)}, {vr(Q,4)}, 0")
        k.e(f"v_mfma_f32_32x32x16_bf16 {vr(S+16*t,16)}, {vr(b+4,4)}, {vr(Q+4,4)}, {vr(S+16*t,16)}")
        if t < 8: k.e(f"{l2}:")
        if n == 3:
            for r in range(16): k.e(f"v_cndmask_b32 v{S+r}, v{S+r}, v{S+128+r}, {sr(64+2*r,2)}")
        if n == 4: mx(0, True); mx(1, False)
        if n > 4: mx(n - 3, False)
    vord = [1, 2, 3, 4, 5, 6, 7, 8, 0]; tv = {}
    def rdv(n):
        t = vord[n]; b = VB + 8 * (n & 1)
        tv[n] = k.ds(f"ds_read_b128 {vr(b,4)}, v7 offset:{t*4096+2048}\nds_read_b128 {vr(b+4,4)}, v7 offset:{t*4096+3072}")
    rdv(0)
    mx(6, False); mx(7, False)
    k.e("v_mov_b32 v5, v4\nv_permlane32_swap_b32 v4, v5\nv_max_f32 v4, v4, v5\nv_sub_f32 v4, 0, v4\nv_mov_b32 v5, v4")
    k.stamp(9)
    def soft(t, dst, mids):
        for i in range(8):
            a = S + 16 * t + 2 * i
            k.e(f"v_pk_add_f32 {vr(a,2)}, {vr(a,2)}, v[4:5]")
            if i > 0: k.e(f"v_cvt_pk_bf16_f32 v{dst+i-1}, v{a-2}, v{a-1}")
            k.e(f"v_exp_f32 v{a}, v{a}\nv_exp_f32 v{a+1}, v{a+1}")
            if i in mids: mids[i]()
        a = S + 16 * t + 14
        k.e(f"v_cvt_pk_bf16_f32 v{dst+7}, v{a}, v{a+1}")
    def pv(n, p, hlf):
        b = VB + 8 * (n & 1) + 4 * hlf
        c = vr(OA, 16) if (n or hlf) else "0"
        k.w(l=tv[n])
        k.e(f"v_mfma_f32_32x32x16_bf16 {vr(OA,16)}, {vr(b,4)}, {vr(p+4*hlf,4)}, {c}")
    pb = [PK, PF]; dr = {}
    for n in range(8):
        t = vord[n] if n < 7 else 0
        mids = {}
        if n > 0:
            mids[1] = lambda: pv(n - 1, pb[(n - 1) & 1], 0)
            mids[3] = lambda: pv(n - 1, pb[(n - 1) & 1], 1)
        if n < 5:
            def d(): dr[n] = w1.drain(5 + n)
            mids[5] = d
        if 1 <= n < 6:
            def iss(): k.w(l=dr[n - 1]); w1.issue(10 + n - 1, "P", n - 1)
            mids[4] = iss
        soft(t, pb[n & 1], mids)
        rdv(n + 1)
    for r in range(8): k.e(f"v_and_b32 v{PK+r}, v{MK+r}, v{PF+r}")
    for r in range(8): k.e(f"v_bfi_b32 v{PF+r}, v{MK+r}, 0, v{PF+r}")
    pv(7, PK, 0); pv(7, PK, 1); pv(8, PF, 0); pv(8, PF, 1)
    k.stamp(10)
    for s in range(10, 15): t = w1.drain(s)
    k.e(f"""s_lshl_b32 s50, s31, 4
    s_add_u32 s50, s50, s29
    s_lshl_b32 s51, s50, 11
    s_add_u32 s51, s51, {OF}
    s_lshl_b32 s50, s50, {FS}
    s_add_u32 s50, s50, {FB}
    v_cmp_gt_u32 vcc, 32, v1
    v_mov_b32 v5, v{OA+12}
    v_mov_b32 v6, v{OA+12}
    v_permlane32_swap_b32 v5, v6
    v_rcp_f32 v6, v6""")
    for r in range(16): k.e(f"v_mul_f32 v{OA+r}, v6, v{OA+r}")
    for r in range(8): k.e(f"v_cvt_pk_bf16_f32 v{PK+r}, v{OA+2*r}, v{OA+2*r+1}")
    k.e(f"v_cndmask_b32 v{PK+6}, 0, v{PK+6}, vcc\nv_cndmask_b32 v{PK+7}, 0, v{PK+7}, vcc")
    to = k.dual(f"buffer_store_dwordx4 {vr(PK,4)}, v2, {WS}, s51 offen@\nbuffer_store_dwordx4 {vr(PK+4,4)}, v2, {WS}, s51 offen offset:1024@")
    k.w(l=t)
    for s in range(15, 20): w1.issue(s, "P", s - 15)
    def tailcode():
        for l1, l2, t in inv:
            k.e(f"{l1}:")
            for r in range(16): k.e(f"v_mov_b32 v{S+16*t+r}, 0xff800000")
            k.e(f"s_branch {l2}")
    return to, tailcode

def phaseC(k, w1, to, lab_nonC):
    AC, XRS, OB, WO = 16, 8, 48, 112
    CRED, CTR = 65536, 65536 + 16384
    k.e("s_lshl_b32 s52, s55, 15")
    wtr_addr(k, 10, True, "s52", "s55")
    for s in range(6): wdrain(k, lambda j, rd: vr(WO + 8 * s + 4 * j + 2 * rd, 2), 10, s, True)
    k.w(v=to); k.flag("s50", True)
    k.stamp(11)
    for s in range(6, 16): t = wdrain(k, lambda j, rd: vr(WO + 8 * s + 4 * j + 2 * rd, 2), 10, s, True)
    k.e(f"""s_lshr_b32 s56, s3, 1
    s_lshl_b32 s64, s61, 1
    s_add_u32 s64, s64, s56
    s_lshl_b32 s65, s60, 1
    s_add_u32 s65, s65, s55
    s_mul_i32 s50, s64, 28672
    s_lshl_b32 s51, s65, 6
    s_add_u32 s50, s50, s51
    v_and_b32 v6, 31, v1
    v_lshrrev_b32 v7, 5, v1
    v_mul_u32_u24 v5, 896, v6
    v_lshl_add_u32 v5, v7, 3, v5
    s_lshl_b32 s51, s64, 15
    s_lshl_b32 s52, s55, 14
    s_add_u32 s51, s51, s52
    s_add_u32 s51, s51, {OF}
    s_lshl_b32 s66, s64, {FS+4}
    s_lshl_b32 s52, s55, {FS+3}
    s_add_u32 s66, s66, s52
    s_add_u32 s66, s66, {FB}""")
    k.srd(S1, 4, 1835008); k.srd(S2, 24, 16384, "s51")
    k.w(l=t); k.e("s_barrier")
    k.commit()
    k.e(f"s_cmp_ge_u32 s28, 28\ns_cbranch_scc1 {lab_nonC}")
    for i in range(4): k.vm(f"buffer_load_dwordx2 {vr(XRS+2*i,2)}, v5, {S1}, s50 offen offset:{16*i}")
    for s in range(20, 28): w1.issue(s, "Q", s - 20)
    k.e(f"v_and_b32 v4, 7, v1\nv_lshlrev_b32 v4, {FS}, v4")
    k.stamp(12)
    k.poll(4, "s66", 8)
    k.stamp(13)
    tk = []
    for s in range(16):
        if s % 4 == 0: k.e(f"s_movk_i32 s48, {s*1024}")
        tk.append(k.vm(f"buffer_load_dwordx4 {vr(OB+4*s,4)}, v2, {S2}, s48 offen offset:{(s%4)*1024} sc1"))
    for s in range(15, 20): t = w1.drain(s)
    k.e(f"""s_mul_i32 s50, s64, 7168
    s_add_u32 s50, s50, {ST}
    s_lshl_b32 s51, s65, 9
    s_add_u32 s51, s51, s50
    s_xor_b32 s52, s3, 1
    s_lshl_b32 s52, s52, 12
    s_add_u32 s52, s52, {CRED}
    s_lshl_b32 s53, s3, 12
    s_add_u32 s53, s53, {CRED}""")
    k.w(l=t)
    for s in range(28, 32): w1.issue(s, "P", s - 28)
    for s in range(16):
        k.w(v=tk[s])
        for j in range(2):
            c = vr(AC + 16 * j, 16) if s else "0"
            k.e(f"v_mfma_f32_32x32x16_bf16 {vr(AC+16*j,16)}, {vr(WO+8*s+4*j,4)}, {vr(OB+4*s,4)}, {c}")
        if 4 <= s < 12: w1.drain(20 + s - 4)
    k.stamp(14)
    k.e("v_add_u32 v3, s52, v2\nv_add_u32 v4, s53, v2")
    for q in range(4): t = k.ds(f"ds_write_b128 v3, {vr(AC+16+4*q,4)} offset:{q*1024}")
    for i in range(8):
        k.e(f"v_lshlrev_b32 v5, 16, v{XRS+i}\nv_and_b32 v6, 0xffff0000, v{XRS+i}\nv_add_f32 v{AC+2*i}, v{AC+2*i}, v5\nv_add_f32 v{AC+2*i+1}, v{AC+2*i+1}, v6")
    k.w(l=t); k.e("s_barrier")
    tr = [k.ds(f"ds_read_b128 {vr(AC+16+4*q,4)}, v4 offset:{q*1024}") for q in range(4)]
    k.e(f"""v_and_b32 v3, 31, v1
    v_lshrrev_b32 v4, 5, v1
    v_lshlrev_b32 v12, 4, v3
    v_lshl_add_u32 v13, v4, 9, v12
    s_lshl_b32 s52, s3, 11
    s_add_u32 s52, s52, {CTR}
    v_lshlrev_b32 v14, 6, v3
    v_lshl_add_u32 v14, v4, 3, v14
    v_add_u32 v14, s52, v14
    v_bfe_u32 v5, v1, 2, 2
    v_lshl_add_u32 v5, v4, 3, v5
    v_lshlrev_b32 v5, 6, v5
    v_bfe_u32 v6, v1, 4, 1
    v_lshl_add_u32 v5, v6, 5, v5
    v_and_b32 v6, 3, v1
    v_lshl_add_u32 v5, v6, 3, v5
    v_add_u32 v15, s52, v5""")
    for q in range(4):
        k.w(l=tr[q])
        for e in range(0, 4, 2): k.e(f"v_pk_add_f32 {vr(AC+4*q+e,2)}, {vr(AC+4*q+e,2)}, {vr(AC+16+4*q+e,2)}")
    k.e(f"v_pk_add_f32 v[4:5], {vr(AC,2)}, {vr(AC+2,2)}\nv_pk_mul_f32 v[6:7], {vr(AC,2)}, {vr(AC,2)}\nv_pk_fma_f32 v[6:7], {vr(AC+2,2)}, {vr(AC+2,2)}, v[6:7]")
    for r in range(4, 16, 2): k.e(f"v_pk_add_f32 v[4:5], v[4:5], {vr(AC+r,2)}\nv_pk_fma_f32 v[6:7], {vr(AC+r,2)}, {vr(AC+r,2)}, v[6:7]")
    k.e("""v_add_f32 v4, v4, v5
    v_add_f32 v5, v6, v7
    v_mov_b32 v6, v4
    v_mov_b32 v7, v5
    v_permlane32_swap_b32 v4, v6
    v_permlane32_swap_b32 v5, v7
    v_add_f32 v4, v4, v6
    v_add_f32 v5, v5, v7
    v_mov_b32 v6, s26
    v_mov_b32 v7, s26
    s_mov_b64 exec, 0xffffffff""")
    k.dual(f"buffer_store_dwordx4 v[4:7], v12, {WS}, s51 offen@")
    k.e("s_mov_b64 exec, -1")
    k.stamp(15)
    for r in range(8): k.e(f"v_cvt_pk_bf16_f32 v{48+r}, v{AC+2*r}, v{AC+2*r+1}")
    k.e(f"""s_mul_i32 s52, s64, 14
    s_add_u32 s52, s52, s65
    s_lshl_b32 s52, s52, 11
    s_add_u32 s52, s52, {HF}""")
    for s in range(28, 32): w1.drain(s)
    lp, l1, dn = k.lab("xpoll"), k.lab("xone"), k.lab("xgot")
    if "xw" in sys.argv: k.wall(); k.stamp(7); k.commit()
    k.e(f"s_add_u32 s53, s50, 4096\ns_mov_b32 s98, 0\n{lp}:")
    for n in range(7): k.e(f"buffer_load_dwordx4 {vr(64+4*n,4)}, v13, {WS}, {'s50' if n < 4 else 's53'} offen offset:{1024*(n&3)} {PSC}")
    k.e("v_mov_b32 v4, -1")
    for n in range(7): k.e(f"s_waitcnt vmcnt({6-n})\nv_cmp_ne_u32 vcc, s26, v{66+4*n}\nv_cndmask_b32 v4, v4, {n}, vcc")
    if PROF and "xp" in sys.argv: k.e("s_memtime s[70:71]\ns_cmp_eq_u32 s98, 0\ns_waitcnt lgkmcnt(0)\ns_cselect_b32 s72, s70, s72\ns_add_u32 s98, s98, 256")
    k.e(f"""v_cmp_le_i32 s[58:59], 0, v4
    v_lshl_add_u32 v4, v4, 10, v13
    s_ff1_i32_b64 s99, s[58:59]
    s_cmp_lt_i32 s99, 0
    s_cbranch_scc1 {dn}
    s_lshl_b64 exec, 1, s99
    {l1}:
    buffer_load_dword v3, v4, {WS}, s50 offen offset:8 {PSC}
    s_add_u32 s98, s98, 1
    s_waitcnt vmcnt(0)
    v_cmp_ne_u32 vcc, s26, v3
    s_cmp_gt_u32 s98, 30000
    s_cbranch_scc1 {dn}
    s_cbranch_vccnz {l1}
    s_mov_b64 exec, -1
    s_branch {lp}
    {dn}:
    s_mov_b64 exec, -1""")
    k.vd = k.vi
    k.vm(f"buffer_store_dwordx4 v[48:51], v2, {WS}, s52 offen sc1\nbuffer_store_dwordx4 v[52:55], v2, {WS}, s52 offen offset:1024 sc1")
    if PROF and "xp" in sys.argv: k.e("v_writelane_b32 v255, s98, 28\nv_writelane_b32 v255, s72, 6")
    k.stamp(16)
    for n in range(1, 7): k.e(f"v_pk_add_f32 v[64:65], v[64:65], {vr(64+4*n,2)}")
    k.e(f"""v_mov_b32 v6, v64
    v_mov_b32 v7, v65
    v_permlane32_swap_b32 v64, v6
    v_permlane32_swap_b32 v65, v7
    v_add_f32 v4, v64, v6
    v_add_f32 v5, v65, v7
    v_mul_f32 v4, {hx(1/448)}, v4
    v_mul_f32 v5, {hx(1/448)}, v5
    v_fma_f32 v5, -v4, v4, v5
    v_max_f32 v5, 0, v5
    v_add_f32 v6, {hx(1e-5)}, v5
    v_rsq_f32 v6, v6
    s_nop 0
    v_mul_f32 v5, v5, v6
    v_mul_f32 v5, v5, v6
    v_add_f32 v5, {hx(1e-5)}, v5
    v_rsq_f32 v5, v5
    s_nop 0
    v_mul_f32 v5, v5, v6
    v_mul_f32 v4, v4, v5""")
    for r in range(16): k.e(f"v_fma_f32 v{AC+r}, v{AC+r}, v5, -v4")
    for r in range(8): k.e(f"v_cvt_pk_bf16_f32 v{56+r}, v{AC+2*r}, v{AC+2*r+1}")
    for i in range(4): t = k.ds(f"ds_write_b64 v14, {vr(56+2*i,2)} offset:{16*i}")
    k.e(f"""s_lshl_b32 s52, s65, 7
    s_lshl_b32 s53, s64, 1
    s_add_u32 s52, s52, s53
    s_lshl_b32 s52, s52, 10
    s_add_u32 s52, s52, {HHF}
    s_lshl_b32 s50, s60, 7
    s_add_u32 s50, s50, s53
    s_add_u32 s50, s50, s55
    s_lshl_b32 s50, s50, {FS}
    s_add_u32 s50, s50, {FC}""")
    k.w(l=t)
    tt = []
    for t in range(2):
        for rd in range(2): x = k.ds(f"ds_read_b64_tr_b16 {vr(64+4*t+2*rd,2)}, v15 offset:{1024*t+256*rd}")
        tt.append(x)
    for t in range(2):
        k.w(l=tt[t]); th = k.vm(f"buffer_store_dwordx4 {vr(64+4*t,4)}, v2, {WS}, s52 offen offset:{1024*t} sc1")
    k.stamp(17)
    return th
```

```python
from g2b import *
ACC, RING, RED = 16, 80, 114688
DEP = 10
def red_addr(k):
    for x in range(1, 4):
        k.e(f"s_xor_b32 s50, s3, {x}\ns_mul_i32 s50, s50, 12288\ns_add_u32 s50, s50, {RED + (x-1)*4096}\nv_add_u32 v{3+x}, s50, v2")
    k.e(f"s_mul_i32 s50, s3, 12288\ns_add_u32 s50, s50, {RED}\nv_add_u32 v7, s50, v2")
def act_addr(k, astride):
    k.e(f"""s_lshr_b32 s56, s3, 1
    s_mul_i32 s50, s56, {astride}
    s_xor_b32 s51, s56, 1
    s_mul_i32 s51, s51, {astride}
    v_add_u32 v242, s50, v2
    v_add_u32 v243, s51, v2""")
def mix_loop(k, n, act_is_B, extra, after=None):
    tok = {}
    def issue(s):
        b = RING + 8 * (s % DEP)
        if s % 4 == 0: k.e(f"s_movk_i32 s49, {s*1024}")
        tok[s] = k.vm(f"buffer_load_dwordx4 {vr(b,4)}, v242, {S2}, s49 offen offset:{(s%4)*1024} sc1\nbuffer_load_dwordx4 {vr(b+4,4)}, v243, {S2}, s49 offen offset:{(s%4)*1024} sc1")
    for s in range(DEP): issue(s)
    if after: after()
    for s in range(n):
        k.w(v=tok[s]); a0 = RING + 8 * (s % DEP)
        extra(s, 0)
        for i in range(2):
            for j in range(2):
                acc = ACC + 16 * (2 * i + j); c = vr(acc, 16) if s else "0"
                A, B = ar(8 * s + 4 * j, 4), vr(a0 + 4 * i, 4)
                if not act_is_B: A, B = B, A
                k.e(f"v_mfma_f32_32x32x16_bf16 {vr(acc,16)}, {A}, {B}, {c}")
        if s + DEP < n: issue(s + DEP)
        extra(s, 1)
def reduce(k, mid=None):
    red_addr(k)
    for x in range(1, 4):
        for q in range(4): t = k.ds(f"ds_write_b128 v{3+x}, {vr(ACC+16*x+4*q,4)} offset:{q*1024}")
    if mid: mid()
    k.w(l=t); k.e("s_barrier")
    tr = [[k.ds(f"ds_read_b128 {vr(ACC+16+16*x+4*q,4)}, v7 offset:{x*4096+q*1024}") for q in range(4)] for x in range(3)]
    for x in range(3):
        for q in range(4):
            k.w(l=tr[x][q])
            for e in (0, 2): k.e(f"v_pk_add_f32 {vr(ACC+4*q+e,2)}, {vr(ACC+4*q+e,2)}, {vr(ACC+16+16*x+4*q+e,2)}")
class W2:
    def __init__(s, k): s.k = k; s.tok = {}
    def setup(s):
        k = s.k
        k.e(f"""s_mul_i32 s96, s3, 28672
        s_lshl_b32 s67, s23, 3
        s_add_u32 s67, s67, s10
        s_mul_i32 s50, s3, {448*4096}
        s_lshl_b32 s51, s67, 7
        s_add_u32 s50, s50, s51
        s_sub_u32 s51, 7340032, s50""")
        k.srd(SW, 16, "s51", "s50")
        wdma_addr(k, WD, 4096); wtr_addr(k, TA, True, "s96", "s55")
    def issue(s, st): s.tok[st] = wdma(s.k, SW, WD, "s96", st % 14, st * 16 * 4096)
    def drain(s, st):
        if st in s.tok: s.k.w(v=s.tok[st])
        return wdrain(s.k, lambda j, rd: ar(8 * st + 4 * j + 2 * rd, 2), TA, st % 14, True)

def gen():
    k = K(MAIN + "_kernel", 256, 256, 163840, 256, 256, 102)
    w1 = W1(k)
    nonC, nonD, joinE, fin = k.lab("nonC"), k.lab("nonD"), k.lab("joinE"), k.lab("fin")
    prologue(k); phaseA(k, w1)
    to, tailB = phaseB(k, w1)
    th = phaseC(k, w1, to, nonC)
    k.e(f"""s_lshl_b32 s51, s22, 18
    s_lshl_b32 s52, s3, 15
    s_add_u32 s51, s51, s52
    s_add_u32 s51, s51, {HHF}
    s_lshl_b32 s66, s22, {FS+7}
    s_lshl_b32 s52, s3, {FS+5}
    s_add_u32 s66, s66, s52
    s_add_u32 s66, s66, {FC}
    s_mov_b32 s57, s50""")
    k.srd(S2, 24, 0x40000, "s51")
    w2 = W2(k); w2.setup(); act_addr(k, 131072)
    k.e(f"v_and_b32 v6, 31, v1\nv_lshlrev_b32 v6, {FS}, v6")
    k.w(v=th); k.flag("s57")
    k.wall(v=False); k.e("s_barrier")
    k.stamp(18); k.commit()
    k.e(f"s_cmp_ge_u32 s10, 7\ns_cbranch_scc1 {nonD}")
    k.poll(6, "s66", 32)
    k.stamp(19)
    nw = [0]
    def exD(s, pos):
        if pos == 1 and s + DEP >= 32 and nw[0] < 14: w2.issue(nw[0]); nw[0] += 1
    mix_loop(k, 32, True, exD)
    k.stamp(20)
    def mid():
        while nw[0] < 14: w2.issue(nw[0]); nw[0] += 1
    reduce(k, mid)
    k.stamp(21)
    k0 = -2 * math.log2(math.e) * math.sqrt(2 / math.pi); k1 = k0 * 0.044715
    k.e(f"""v_mov_b32 v8, {hx(k1)}
    s_mul_i32 s50, s23, 7
    s_add_u32 s50, s50, s10
    s_lshl_b32 s50, s50, 1
    s_add_u32 s50, s50, s55
    s_lshl_b32 s51, s22, 1
    s_add_u32 s51, s51, s56
    s_mul_i32 s52, s51, 56
    s_add_u32 s52, s52, s50
    s_lshl_b32 s52, s52, 11
    s_add_u32 s52, s52, {UF}
    s_mul_i32 s57, s22, 112
    s_lshl_b32 s50, s50, 1
    s_add_u32 s57, s57, s50
    s_add_u32 s57, s57, s56
    s_lshl_b32 s57, s57, {FS}
    s_add_u32 s57, s57, {FD}""")
    for i in range(8):
        k.e(f"v_lshlrev_b32 v4, 16, v{B1R+i}\nv_and_b32 v5, 0xffff0000, v{B1R+i}\nv_pk_add_f32 {vr(ACC+2*i,2)}, {vr(ACC+2*i,2)}, v[4:5]")
    T = 32
    nd = [0]
    def dr(c):
        for _ in range(c):
            if nd[0] < 14: nd[1:] = [w2.drain(nd[0])]; nd[0] += 1
    for g in range(4):
        R = range(4 * g, 4 * g + 4)
        for r in R: k.e(f"v_mul_f32 v{T+r}, v{ACC+r}, v{ACC+r}")
        for r in R: k.e(f"v_fmaak_f32 v{T+r}, v{T+r}, v8, {hx(k0)}")
        for r in R: k.e(f"v_mul_f32 v{T+r}, v{T+r}, v{ACC+r}")
        for r in R: k.e(f"v_exp_f32 v{T+r}, v{T+r}")
        dr(1)
        for r in R: k.e(f"v_add_f32 v{T+r}, 1.0, v{T+r}")
        for r in R: k.e(f"v_rcp_f32 v{T+r}, v{T+r}")
        dr(1)
        for r in R: k.e(f"v_mul_f32 v{T+r}, v{T+r}, v{ACC+r}")
        for r in (2 * g, 2 * g + 1): k.e(f"v_cvt_pk_bf16_f32 v{48+r}, v{T+2*r}, v{T+2*r+1}")
        if g & 1: tu = k.vm(f"buffer_store_dwordx4 {vr(48+2*g-2,4)}, v2, {WS}, s52 offen offset:{(g>>1)*1024} sc1")
    k.stamp(22)
    k.w(l=nd[1])
    for s in range(14, 19): w2.issue(s)
    dr(6)
    k.w(v=tu); k.flag("s57")
    k.w(l=nd[1])
    for s in range(19, 28): w2.issue(s)
    k.e('s_barrier')
    k.stamp(23); k.commit()
    k.e(f"""{joinE}:
    s_mul_i32 s51, s22, {2*114688}
    s_mul_i32 s52, s3, {28*1024}
    s_add_u32 s51, s51, s52
    s_add_u32 s51, s51, {UF}
    s_mul_i32 s66, s22, {112<<FS}
    s_mul_i32 s52, s3, {28<<FS}
    s_add_u32 s66, s66, s52
    s_add_u32 s66, s66, {FD}
    v_and_b32 v6, 31, v1
    v_min_u32 v6, 27, v6
    v_lshlrev_b32 v6, {FS}, v6""")
    k.srd(S2, 24, 2 * 114688, "s51"); k.srd(S1, 20, 1835008)
    act_addr(k, 114688)
    k.e(f"""s_lshl_b32 s64, s67, 1
    s_add_u32 s64, s64, s55
    s_lshl_b32 s65, s22, 1
    s_add_u32 s65, s65, s56
    s_mul_i32 s57, s64, 14
    s_add_u32 s57, s57, s65
    s_lshl_b32 s57, s57, 11
    s_add_u32 s57, s57, {HF}""")
    k.poll(6, "s66", 28)
    k.stamp(24)
    w2.tok = {}
    hh = {}
    def aft(): hh[0] = k.vm(f"buffer_load_dwordx4 v[8:11], v2, {WS}, s57 offen sc1\nbuffer_load_dwordx4 v[12:15], v2, {WS}, s57 offen offset:1024 sc1")
    def exE(s, pos):
        if pos == 1 and s < 14: hh[14 + s] = w2.drain(14 + s)
        if pos == 0 and s >= 14: k.w(l=hh[s])
    mix_loop(k, 28, False, exE, aft)
    k.stamp(25)
    reduce(k)
    k.stamp(26)
    k.e(f"""v_and_b32 v3, 31, v1
    v_lshrrev_b32 v4, 5, v1
    v_mul_u32_u24 v7, 896, v3
    v_lshl_add_u32 v7, v4, 4, v7
    s_mul_i32 s50, s64, 28672
    s_lshl_b32 s51, s65, 6
    s_add_u32 s50, s50, s51
    v_lshlrev_b32 v{B2R}, 16, v{B2R}""")
    k.w(v=hh[0])
    for i in range(8):
        k.e(f"""v_lshlrev_b32 v4, 16, v{8+i}
        v_and_b32 v5, 0xffff0000, v{8+i}
        v_add_f32 v4, v4, v{B2R}
        v_add_f32 v5, v5, v{B2R}
        v_pk_add_f32 {vr(ACC+2*i,2)}, {vr(ACC+2*i,2)}, v[4:5]
        v_cvt_pk_bf16_f32 v{40+i}, v{ACC+2*i}, v{ACC+2*i+1}""")
        if i & 3 == 3:
            g = i >> 2
            k.e(f"v_permlane32_swap_b32 v{40+4*g}, v{42+4*g}\nv_permlane32_swap_b32 v{41+4*g}, v{43+4*g}")
            k.vm(f"buffer_store_dwordx4 {vr(40+4*g,4)}, v7, {S1}, s50 offen offset:{32*g}")
    k.e(f"s_or_b32 s50, s2, s3\ns_cmp_lg_u32 s50, 0\ns_cbranch_scc1 {fin}_c\ns_mov_b32 s50, {NONCE}")
    k.flag("s50")
    k.e(f"{fin}_c:")
    k.stamp(27); k.commit()
    k.e(f"{fin}:")
    if PROF:
        k.e(f"""s_memrealtime s[98:99]
        s_getreg_b32 s50, hwreg(HW_REG_XCC_ID)
        s_lshl_b32 s51, s2, 2
        s_add_u32 s51, s51, s3
        s_lshl_b32 s51, s51, 7
        s_add_u32 s51, s51, {TS}
        v_lshlrev_b32 v3, 2, v1
        s_waitcnt lgkmcnt(0)
        v_writelane_b32 v255, s98, 31
        v_writelane_b32 v255, s50, 29
        s_mov_b64 exec, 0xffffffff
        buffer_store_dword v255, v3, {WS}, s51 offen""")
    k.e(f"{k.name}_end:\ns_endpgm")
    tailB()
    k.e(f"""{nonC}:
    s_sub_u32 s50, s28, 28
    s_lshl_b32 s50, s50, 2
    s_add_u32 s50, s50, s3
    s_and_b32 s51, s27, 1
    s_mul_i32 s51, s51, 448
    s_add_u32 s50, s50, s51
    s_lshl_b32 s50, s50, 12
    s_lshl_b32 s51, s23, 10
    s_add_u32 s50, s50, s51""")
    k.srd(S1, 16, 7340032); k.wall()
    for j in range(0 if NOBG else 56):
        k.e(f"s_add_u32 s51, s50, {((j&1)*896 + (j>>1)*16)*4096}")
        k.vm(f"buffer_load_dwordx4 v[16:19], v2, {S1}, s51 offen")
    w2.setup()
    k.e(f"{nonD}:\ns_cmp_ge_u32 s10, 8\ns_cbranch_scc1 {fin}")
    k.wall()
    for s in range(14): w2.issue(s)
    for s in range(14): t = w2.drain(s)
    k.w(l=t)
    for s in range(14, 28): w2.issue(s)
    k.e(f"s_lshr_b32 s56, s3, 1\ns_branch {joinE}")
    return k
if __name__ == "__main__":
    k = gen()
    t = build([k])
    name = [a[5:] for a in sys.argv if a.startswith("name=")]
    assemble(t, name[0] if name else ("v2p" if PROF else "v2"), [k])
    if "install" in sys.argv: open(f"cdna_kernels/{MAIN}.s", "w").write(t)
    print(len(t), "bytes", len(k.lines), "lines")
```
